```python
import torch

def _softmax(x, axis=-1):
    return torch.softmax(x, dim=axis)
def _gelu(x):
    return torch.nn.functional.gelu(x, approximate="tanh")
def _silu(x):
    return torch.nn.functional.silu(x)
def _sigmoid(x):
    return torch.sigmoid(x)
def _layernorm(x, axis=-1, eps=1e-5):
    m = x.mean(dim=axis, keepdim=True)
    v = x.var(dim=axis, keepdim=True, unbiased=False)
    return (x - m) / torch.sqrt(v + eps)
def _scatter_add(tgt, idx, src, axis=0):
    return tgt.clone().index_add_(axis, idx, src)
def _segment_sum(src, seg, n):
    out = torch.zeros((n,) + src.shape[1:], dtype=src.dtype)
    return out.index_add_(0, seg, src)
def _pad(x, pw):
    flat = tuple(v for pair in reversed(pw) for v in pair)
    return torch.nn.functional.pad(x, flat)

kernel_name = 'concat_heads__linear_kernel_hedgehog__mha_block__prompt'

def setup_inputs():

    _w = (lambda a: (lambda t: t.to(torch.bfloat16) if t.is_floating_point() else t)(torch.as_tensor(a)))
    def _A_setup():
        B, S, D, H = 1, 2048, 448, 16
        Dh = D // H
        return {
            "x": _w((lambda *s: torch.randn(*s, dtype=torch.bfloat16) * 0.8)(B, S, D)),
            "wqkv": _w((lambda *s: torch.randn(*s, dtype=torch.bfloat16) * 1.6)(D, 3 * D)),
            "w_phi": _w((lambda *s: torch.randn(*s, dtype=torch.bfloat16) * 1.6)(H, Dh, Dh) * (Dh ** -0.5)),
            "wo": _w((lambda *s: torch.randn(*s, dtype=torch.bfloat16) * 0.1)(D, D)),
        }
    _A_in = _A_setup()

    def _B_setup():
        B, S, D, H = 1, 2048, 448, 16
        return {
            "x": _w((lambda *s: torch.randn(*s, dtype=torch.bfloat16) * 0.4)(B, S, D)),
            "wqkv": _w((lambda *s: torch.randn(*s, dtype=torch.bfloat16) * 0.4)(D, 3 * D)),
            "wo": _w((lambda *s: torch.randn(*s, dtype=torch.bfloat16) * 0.05)(D, D)),
        }
    _B_in = _B_setup()

    return {
        "A_x": _A_in["x"],
        "A_wqkv": _A_in["wqkv"],
        "A_w_phi": _A_in["w_phi"],
        "A_wo": _A_in["wo"],
        "B_x": _B_in["x"],
        "B_wqkv": _B_in["wqkv"],
        "B_wo": _B_in["wo"],
    }

def reference(A_x, A_wqkv, A_w_phi, A_wo, B_x, B_wqkv, B_wo):
    def _A_ref(x, wqkv, w_phi, wo):
        B, S, D = x.shape
        H = 16; Dh = D // H
        qkv = (lambda x, *d: x.permute(*d))((x @ wqkv).reshape(B, S, 3, H, Dh), 2, 0, 3, 1, 4)
        q, k, v = qkv[0], qkv[1], qkv[2]
        pq = torch.einsum("bhsd,hdf->bhsf", q, w_phi)
        pk = torch.einsum("bhsd,hdf->bhsf", k, w_phi)
        phi_q = torch.concatenate([_softmax(pq, axis=-1), _softmax(-pq, axis=-1)], axis=-1)
        phi_k = torch.concatenate([_softmax(pk, axis=-1), _softmax(-pk, axis=-1)], axis=-1)
        kv = torch.einsum("bhsf,bhsd->bhfd", phi_k, v)
        z  = torch.einsum("bhsf->bhf", phi_k)
        num = torch.einsum("bhqf,bhfd->bhqd", phi_q, kv)
        den = torch.einsum("bhqf,bhf->bhq", phi_q, z)[..., None] + 1e-6
        o = num / den
        return (lambda x, *d: x.permute(*d))(o, 0, 2, 1, 3).reshape(B, S, D) @ wo

    def _B_ref(x, wqkv, wo):
        B, S, D = x.shape
        H = 16
        Dh = D // H
        qkv = (lambda x, *d: x.permute(*d))((x @ wqkv).reshape(B, S, 3, H, Dh), 2, 0, 3, 1, 4)
        q, k, v = qkv[0], qkv[1], qkv[2]
        scores = torch.einsum("bhqd,bhkd->bhqk", q, k) * (Dh ** -0.5)
        p = _softmax(scores, axis=-1)
        o = torch.einsum("bhqk,bhkd->bhqd", p, v)
        return (lambda x, *d: x.permute(*d))(o, 0, 2, 1, 3).reshape(B, S, D) @ wo

    a = _A_ref(A_x, A_wqkv, A_w_phi, A_wo)
    b = _B_ref(B_x, B_wqkv, B_wo)
    return torch.concatenate([a, b], axis=-1)
```

```python
import re

TRANS = ("v_exp_", "v_log_", "v_rcp_", "v_rsq_", "v_sqrt_", "v_sin_", "v_cos_")
RMW_DST = ("v_fmac_", "v_mac_", "v_pk_fmac", "v_dot2c", "v_writelane")

_REG = re.compile(r"^(-|\|)?(abs\()?([vsa])(\d+|\[(\d+):(\d+)\])\)?\|?$")


def regs_of(tok):
    tok = tok.strip()
    if tok in ("vcc", "exec"):
        return {(tok, 0), (tok, 1)}
    if tok in ("vcc_lo", "exec_lo"):
        return {(tok[:-3], 0)}
    if tok in ("vcc_hi", "exec_hi"):
        return {(tok[:-3], 1)}
    if tok == "m0":
        return {("m0", 0)}
    m = _REG.match(tok)
    if not m:
        return set()
    k = m.group(3)
    if m.group(5) is not None:
        return {(k, i) for i in range(int(m.group(5)), int(m.group(6)) + 1)}
    return {(k, int(m.group(4)))}


class Ins:
    __slots__ = ("text", "op", "kind", "rd", "wr", "passes", "srcc", "dst_tok", "srcc_tok", "wide_store", "lds_dma", "nops", "dpp")

    def __init__(self, text):
        self.text = text
        body = text.split(";")[0].strip()
        parts = body.split(None, 1)
        self.op = op = parts[0]
        rest = parts[1] if len(parts) > 1 else ""
        toks = [t.strip() for t in rest.split(",")] if rest else []
        mods = []
        if toks:
            last = toks[-1].split()
            toks[-1] = last[0] if last else ""
            mods = last[1:]
        self.rd, self.wr = set(), set()
        self.passes = 0
        self.srcc = set()
        self.dst_tok = self.srcc_tok = None
        self.wide_store = False
        self.lds_dma = False
        self.nops = 1
        self.dpp = any(m.startswith(("row_", "quad_perm", "wave_", "row_bcast")) for m in mods)
        R = regs_of
        if op == "s_nop":
            self.kind = "nop"
            self.nops = int(toks[0], 0) + 1
        elif op.startswith("v_mfma"):
            self.kind = "mfma"
            self.passes = 8 if "32x32" in op else 4
            self.wr = R(toks[0]); self.dst_tok = toks[0]
            self.srcc = R(toks[3]); self.srcc_tok = toks[3]
            self.rd = R(toks[1]) | R(toks[2])
        elif op.startswith("v_"):
            self.kind = "trans" if op.startswith(TRANS) else "valu"
            if op.startswith("v_permlane"):
                self.kind = "permlane"
                self.rd = R(toks[0]) | R(toks[1]); self.wr = set(self.rd)
            elif op.startswith(("v_readfirstlane", "v_readlane")):
                self.kind = "readlane"
                self.wr = R(toks[0])
                for t in toks[1:]: self.rd |= R(t)
            elif op.startswith(("v_add_co", "v_sub_co", "v_addc_co", "v_subb_co", "v_subrev_co")):
                self.wr = R(toks[0]) | R(toks[1])
                for t in toks[2:]: self.rd |= R(t)
            else:
                self.wr = R(toks[0])
                for t in toks[1:]: self.rd |= R(t)
                if op.startswith(RMW_DST): self.rd |= self.wr
                if any("UNUSED_PRESERVE" in m for m in mods): self.rd |= self.wr
        elif op.startswith("ds_"):
            self.kind = "ds"
            if op.startswith(("ds_read", "ds_bpermute", "ds_permute", "ds_swizzle")) or "_rtn" in op:
                self.wr = R(toks[0])
                for t in toks[1:]: self.rd |= R(t)
            else:
                for t in toks: self.rd |= R(t)
        elif op.startswith(("buffer_", "global_")):
            self.kind = "vmem"
            is_store = "store" in op
            is_atomic = "atomic" in op
            self.lds_dma = "lds" in mods or "_lds_" in op
            if op.startswith(("buffer_wbl2", "buffer_inv")):
                pass
            elif self.lds_dma:
                for t in toks: self.rd |= R(t)
                self.rd |= {("m0", 0)}
            elif is_store or (is_atomic and "sc0" not in mods):
                for t in toks: self.rd |= R(t)
                self.wide_store = is_store and op.endswith(("x3", "x4"))
                if self.wide_store:
                    self.srcc = R(toks[0]) if op.startswith("buffer_") else R(toks[1])
            elif is_atomic:
                self.wr = R(toks[0])
                for t in toks: self.rd |= R(t)
            else:
                self.wr = R(toks[0])
                for t in toks[1:]: self.rd |= R(t)
        elif op.startswith("s_"):
            self.kind = "salu"
            if op.startswith(("s_cbranch", "s_branch", "s_setpc", "s_endpgm")):
                self.kind = "branch"
            elif op.startswith(("s_waitcnt", "s_barrier", "s_setprio", "s_sleep", "s_sethalt")):
                pass
            elif op.startswith("s_cmp") or op.startswith("s_bitcmp"):
                for t in toks: self.rd |= R(t)
            elif op.startswith(("s_load", "s_memtime", "s_memrealtime", "s_buffer_load")):
                self.kind = "smem"
                self.wr = R(toks[0])
                for t in toks[1:]: self.rd |= R(t)
            else:
                self.wr = R(toks[0])
                for t in toks[1:]: self.rd |= R(t)
                if "saveexec" in op: self.wr |= R("exec"); self.rd |= R("exec")
                if op.startswith(("s_addk", "s_mulk")): self.rd |= self.wr
        else:
            raise ValueError("unknown instruction: " + text)


VALU_KINDS = ("valu", "trans", "permlane", "readlane")


def required(prev, cur):
    need = 0
    pv = prev.kind in VALU_KINDS
    cv = cur.kind in VALU_KINDS
    pw_v = {r for r in prev.wr if r[0] in "va"}
    pw_s = {r for r in prev.wr if r[0] in ("s", "vcc", "exec")}
    if pv:
        if cur.kind == "mfma" and pw_v & (cur.rd | cur.srcc): need = max(need, 2)
        if cur.kind == "permlane" and pw_v & cur.rd: need = max(need, 2)
        if cur.dpp and pw_v & cur.rd: need = max(need, 2)
        if cur.kind == "readlane" and pw_v & cur.rd: need = max(need, 1)
        if prev.kind == "trans" and cv and cur.kind != "trans" and pw_v & cur.rd: need = max(need, 1)
        if pw_s:
            if cv and pw_s & cur.rd: need = max(need, 4 if cur.kind == "readlane" else 2)
            if cur.kind == "vmem" and pw_s & cur.rd: need = max(need, 5)
            if cur.kind in ("salu", "smem", "branch") and pw_s & cur.rd: need = max(need, 1)
    if prev.kind == "mfma":
        big = prev.passes == 8
        if cur.kind == "mfma":
            if prev.wr & cur.rd: need = max(need, 12 if big else 8)
            if prev.wr & cur.srcc and not (prev.dst_tok == cur.srcc_tok and prev.passes == cur.passes):
                need = max(need, 10 if big else 6)
            if prev.wr & cur.wr and not (prev.wr & cur.srcc) and prev.passes != cur.passes:
                need = max(need, 10 if big else 6)
        elif cv or cur.kind in ("vmem", "ds"):
            if prev.wr & (cur.rd | cur.wr): need = max(need, 12 if big else 8)
            if cv and prev.srcc & cur.wr: need = max(need, 7 if big else 3)
    if prev.kind == "salu" and ("m0", 0) in prev.wr and cur.lds_dma: need = max(need, 1)
    if prev.kind == "vmem" and prev.wide_store and prev.srcc & cur.wr:
        need = max(need, 2 if cv else 1)
    return need


def worst_case(prev):
    if prev.kind == "mfma": return 12 if prev.passes == 8 else 8
    if prev.kind in VALU_KINDS:
        return 5 if any(r[0] in ("s", "vcc", "exec") for r in prev.wr) else 2
    if prev.kind == "vmem" and prev.wide_store: return 2
    if prev.kind == "salu" and ("m0", 0) in prev.wr: return 1
    return 0


class Asm:
    def __init__(self):
        self.items = []
        self.vm_n = 0
        self.lg_n = 0

    def __call__(self, text):
        for ln in text.strip("\n").split("\n"):
            ln = ln.strip()
            if not ln or ln.startswith(";"):
                continue
            if ln.endswith(":"):
                self.items.append(("l", ln[:-1]))
                continue
            self.items.append(("i", ln))
            op = ln.split()[0]
            if op.startswith(("buffer_", "global_")): self.vm_n += 1
            if op.startswith("ds_"): self.lg_n += 1

    def label(self, name): self.items.append(("l", name))
    def raw(self, text): self.items.append(("r", text))

    def vm_mark(self): return self.vm_n
    def lg_mark(self): return self.lg_n
    def wait_vm(self, mark):
        n = self.vm_n - mark
        assert n >= 0
        if n <= 63: self(f"s_waitcnt vmcnt({n})")
    def wait_lg(self, mark):
        n = self.lg_n - mark
        assert n >= 0
        self(f"s_waitcnt lgkmcnt({min(n, 15)})" if n <= 15 else "s_nop 0")
        assert n <= 15, "too many LDS ops in flight for a counted wait"

    def render(self):
        out = []
        hist = []
        nnop = 0
        def pad(n):
            nonlocal nnop
            while n > 0:
                k = min(n, 16)
                out.append(f"    s_nop {k-1}")
                for h in hist: h[1] += k
                n -= k; nnop += k
        def flush():
            need = 0
            for p, d in hist: need = max(need, worst_case(p) - d)
            pad(need)
            hist.clear()
        for kind, text in self.items:
            if kind == "r":
                out.append(text); continue
            if kind == "l":
                flush(); out.append(text + ":"); continue
            ins = Ins(text)
            if ins.kind == "branch" and ins.op != "s_endpgm":
                need = 0
                for p, d in hist: need = max(need, required(p, ins) - d)
                pad(need)
                flush_needed = max([worst_case(p) - d - 1 for p, d in hist] + [0])
                pad(flush_needed)
                out.append("    " + text)
                hist.clear()
                continue
            need = 0
            for p, d in hist: need = max(need, required(p, ins) - d)
            pad(need)
            out.append("    " + text)
            for h in hist: h[1] += ins.nops
            hist[:] = [h for h in hist if h[1] < 20]
            hist.append([ins, 0])
        self.nnop = nnop
        return "\n".join(out) + "\n"


class Regs:
    def __init__(self, kind, first, last):
        self.kind, self.free_ = kind, [True] * (last + 1)
        for i in range(first): self.free_[i] = False
        self.hi = first - 1
    def alloc(self, n=1, align=1):
        if n >= 2 and align == 1 and self.kind in "vs": align = 2
        i = 0
        while True:
            i = -(-i // align) * align
            if i + n > len(self.free_): raise RuntimeError("out of registers " + self.kind)
            if all(self.free_[i:i + n]):
                for j in range(i, i + n): self.free_[j] = False
                self.hi = max(self.hi, i + n - 1)
                return i
            i += 1
    def free(self, base, n=1):
        for j in range(base, base + n):
            assert not self.free_[j]
            self.free_[j] = True


def v(b, n=1): return f"v{b}" if n == 1 else f"v[{b}:{b+n-1}]"
def s(b, n=1): return f"s{b}" if n == 1 else f"s[{b}:{b+n-1}]"


def kernel_desc(name, vgprs, sgprs=102):
    acc = -(-vgprs // 4) * 4
    return f""".p2align 6
.amdhsa_kernel {name}
  .amdhsa_next_free_vgpr {vgprs}
  .amdhsa_next_free_sgpr {sgprs}
  .amdhsa_accum_offset {acc}
  .amdhsa_group_segment_fixed_size 0
  .amdhsa_kernarg_size 80
  .amdhsa_user_sgpr_count 2
  .amdhsa_user_sgpr_kernarg_segment_ptr 1
  .amdhsa_system_sgpr_workgroup_id_x 1
  .amdhsa_float_denorm_mode_32 3
.end_amdhsa_kernel
"""


def kernel_head(name):
    return f".globl {name}\n.p2align 8\n.type {name},@function\n{name}:\n"
```

```python
MB = 1 << 20
WS_BASE = 0
BR_STRIDE = 6 * MB
QF, KF, VF = 0, 2 * MB, 4 * MB
OF = 12 * MB
KVP = 16 * MB
KVF = 18 * MB
FLG = 18 * MB + 512 * 1024
WS_SIZE = 22 * MB
X_BYTES = 2048 * 448 * 2
W_BYTES = 448 * 1344 * 2
WO_BYTES = 448 * 448 * 2
WPHI_BYTES = 16 * 28 * 28 * 2
OUT_BYTES = 2048 * 896 * 2
QSCALE = 1.4426950408889634 / (28 ** 0.5)
ONES2 = 0x3F803F80

import struct
def f32bits(x): return struct.unpack("<I", struct.pack("<f", x))[0]


def srd(a, base_s, lo, hi, nbytes, add=0):
    if add:
        a(f"s_add_u32 s{base_s}, s{lo}, {add}")
        a(f"s_addc_u32 s{base_s+1}, s{hi}, 0")
    else:
        a(f"s_mov_b32 s{base_s}, s{lo}")
        a(f"s_mov_b32 s{base_s+1}, s{hi}")
    a(f"s_mov_b32 s{base_s+2}, {nbytes}")
    a(f"s_mov_b32 s{base_s+3}, 0x00020000")
```

```python
import sys
from k1 import gen_k1

HEADER = """; concat_heads(linear_kernel_hedgehog, mha_block): generated by a hand-written generator (gen/*.py)
"""

def build(parts):
    head = HEADER
    for name, (t, d, info) in parts:
        head += f"; @launch kernel={name} grid=({info['grid']},1,1) block=({info['block']},1,1) lds={info['lds']}\n"
    body = '.amdgcn_target "amdgcn-amd-amdhsa--gfx950"\n.text\n'
    for name, (t, d, info) in parts: body += t
    body += '.section .rodata,"a"\n'
    for name, (t, d, info) in parts: body += d
    return head + body

def all_parts(which="123", **kw):
    parts = []
    if "1" in which: parts.append(("k1_kernel", gen_k1(**kw.get("k1", {}))))
    if "2" in which:
        from k2 import gen_k2
        parts.append(("k2_kernel", gen_k2(**kw.get("k2", {}))))
    if "3" in which:
        from k3 import gen_k3
        parts.append(("k3_kernel", gen_k3(**kw.get("k3", {}))))
    return parts

if __name__ == "__main__":
    which = sys.argv[1] if len(sys.argv) > 1 else "123"
    out = sys.argv[2] if len(sys.argv) > 2 else "out.s"
    parts = all_parts(which)
    open(out, "w").write(build(parts))
    for n, (t, d, info) in parts: print(n, info)
```

```python
from asmgen import *
from common import *

NWG = 224
XST = lambda st: 16384 * st
WST0 = 49152
LDS_BYTES = 122880


def gen_k1(name="k1_kernel", store_mod=""):
    a = Asm()
    V = Regs("v", 1, 255)
    sX, sW, sWS = 8, 12, 16
    s_br, s_rb, s_ct, s_w, s_rp, s_cp, s_u = 20, 21, 22, 23, 24, 25, 26
    s_xoff, s_woff, s_stT, s_stN, s_scale, s_tmp, s_tmp2 = 27, 28, 29, 30, 31, 32, 33
    s_hmask = 34
    s_T0 = 36
    a(f"""
    s_cmp_ge_u32 s2, {NWG}
    s_cbranch_scc1 {name}_done
    s_load_dwordx4 s[40:43], s[0:1], 0
    s_load_dwordx4 s[44:47], s[0:1], 32
    s_load_dwordx2 s[48:49], s[0:1], 72
    s_and_b32 s{s_tmp}, s2, 7
    s_lshr_b32 s{s_tmp2}, s2, 3
    s_lshr_b32 s{s_br}, s{s_tmp}, 2
    s_and_b32 s{s_tmp}, s{s_tmp}, 3
    s_lshl_b32 s{s_tmp}, s{s_tmp}, 2
    s_and_b32 s{s_rb}, s{s_tmp2}, 3
    s_add_u32 s{s_rb}, s{s_rb}, s{s_tmp}
    s_lshr_b32 s{s_ct}, s{s_tmp2}, 2
    v_lshrrev_b32 v1, 6, v0
    s_nop 0
    v_readfirstlane_b32 s{s_w}, v1
    v_and_b32 v0, 63, v0
    s_mov_b32 s{s_hmask}, 0
    s_mov_b32 s{s_hmask+1}, -1
    s_waitcnt lgkmcnt(0)
    s_cmp_eq_u32 s{s_br}, 0
    s_cselect_b32 s40, s40, s44
    s_cselect_b32 s41, s41, s45
    s_cselect_b32 s42, s42, s46
    s_cselect_b32 s43, s43, s47
    """)
    srd(a, sX, 40, 41, X_BYTES)
    srd(a, sW, 42, 43, W_BYTES)
    srd(a, sWS, 48, 49, WS_SIZE, WS_BASE)
    a(f"""
    s_and_b32 s{s_rp}, s{s_w}, 1
    s_lshr_b32 s{s_cp}, s{s_w}, 1
    s_lshl_b32 s{s_u}, s{s_ct}, 1
    s_add_u32 s{s_u}, s{s_u}, s{s_cp}
    s_mul_i32 s{s_T0}, s{s_u}, 3
    s_lshl_b32 s{s_tmp}, s{s_rb}, 2
    s_add_u32 s{s_tmp}, s{s_tmp}, s{s_w}
    s_mul_i32 s{s_xoff}, s{s_tmp}, {32*896}
    s_mul_i32 s{s_woff}, s{s_w}, {16*2688}
    s_mul_i32 s{s_tmp}, s{s_ct}, 384
    s_add_u32 s{s_woff}, s{s_woff}, s{s_tmp}
    """)
    vX = [V.alloc() for _ in range(4)]
    vW = [V.alloc() for _ in range(6)]
    t0, t1, t2, t3 = [V.alloc() for _ in range(4)]
    for i in range(4):
        a(f"""
        v_lshrrev_b32 v{t0}, 3, v0
        v_add_u32 v{t0}, {8*i}, v{t0}
        v_mul_u32_u24 v{t0}, 896, v{t0}
        v_lshrrev_b32 v{t1}, 4, v0
        v_add_u32 v{t1}, {4*i}, v{t1}
        v_and_b32 v{t1}, 7, v{t1}
        v_and_b32 v{t2}, 7, v0
        v_xor_b32 v{t1}, v{t1}, v{t2}
        v_lshlrev_b32 v{t1}, 4, v{t1}
        v_add_u32 v{vX[i]}, v{t0}, v{t1}
        """)
    for i in range(6):
        a(f"""
        v_lshrrev_b32 v{t0}, 3, v0
        v_add_u32 v{t0}, {8*i}, v{t0}
        v_mul_u32_u24 v{t1}, 171, v{t0}
        v_lshrrev_b32 v{t1}, 9, v{t1}
        v_mul_u32_u24 v{t2}, 3, v{t1}
        v_sub_u32 v{t2}, v{t0}, v{t2}
        v_lshlrev_b32 v{t2}, 7, v{t2}
        v_mul_u32_u24 v{t0}, 2688, v{t1}
        v_add_u32 v{t0}, v{t0}, v{t2}
        v_lshrrev_b32 v{t1}, 1, v{t1}
        v_and_b32 v{t1}, 1, v{t1}
        v_lshlrev_b32 v{t1}, 2, v{t1}
        v_and_b32 v{t2}, 7, v0
        v_xor_b32 v{t1}, v{t1}, v{t2}
        v_lshlrev_b32 v{t1}, 4, v{t1}
        v_add_u32 v{vW[i]}, v{t0}, v{t1}
        """)
    s_mx, s_mw, s_sx, s_sw = 50, 51, 52, 53
    a(f"""
    s_lshl_b32 s{s_mx}, s{s_w}, 12
    s_mul_i32 s{s_mw}, s{s_w}, 6144
    s_add_u32 s{s_mw}, s{s_mw}, {WST0}
    """)

    def dma_ops(c):
        st = c % 3
        ops = []
        for i in range(4):
            ops.append((f"s_add_u32 m0, s{s_mx}, {XST(st) + 1024*i}",
                        f"buffer_load_dwordx4 v{vX[i]}, s[{sX}:{sX+3}], s{s_sx} offen lds"))
        for i in range(6):
            ops.append((f"s_add_u32 m0, s{s_mw}, {24576*st + 1024*i}",
                        f"buffer_load_dwordx4 v{vW[i]}, s[{sW}:{sW+3}], s{s_sw} offen lds"))
        return ops

    def dma_soff(c):
        a(f"s_add_u32 s{s_sx}, s{s_xoff}, {128*c}")
        a(f"s_add_u32 s{s_sw}, s{s_woff}, {64*2688*c}")

    marks = {}
    for c in range(3):
        dma_soff(c)
        for m, ld in dma_ops(c):
            a(m); a("s_nop 0"); a(ld)
        marks[c] = a.vm_mark()

    s_q = 54
    vP = V.alloc(4, 4)
    vA = V.alloc()
    vZ = V.alloc(4, 4)
    a(f"""
    s_lshl_b32 s{s_q}, s{s_ct}, 2
    s_add_u32 s{s_q}, s{s_q}, s{s_w}
    s_mul_i32 s{s_stT}, s{s_br}, {BR_STRIDE}
    s_lshl_b32 s{s_tmp}, s{s_rb}, 13
    s_add_u32 s{s_stN}, s{s_stT}, s{s_tmp}
    v_mov_b32 v{vP}, {ONES2}
    v_mov_b32 v{vP+1}, 0x00003f80
    """)
    for rep in range(2):
        a(f"""
        s_add_u32 s{s_tmp}, s{s_q}, {28*rep}
        s_lshr_b32 s{s_tmp2}, s{s_tmp}, 1
        s_lshl_b32 s{s_tmp2}, s{s_tmp2}, 17
        s_cmp_lt_u32 s{s_tmp}, 32
        s_cselect_b32 s{s_tmp2}, s{s_tmp2}, 0x40000000
        s_and_b32 s{s_tmp}, s{s_tmp}, 1
        s_lshl_b32 s{s_tmp}, s{s_tmp}, 12
        s_add_u32 s{s_tmp}, s{s_tmp}, s{s_tmp2}
        s_add_u32 s{s_tmp}, s{s_tmp}, {KF + 1024 + 512 + 8}
        v_lshrrev_b32 v{t0}, 5, v0
        v_lshlrev_b32 v{t0}, 11, v{t0}
        v_and_b32 v{t1}, 31, v0
        v_lshlrev_b32 v{t1}, 4, v{t1}
        v_add3_u32 v{vA}, v{t0}, v{t1}, s{s_tmp}
        buffer_store_dwordx2 v[{vP}:{vP+1}], v{vA}, s[{sWS}:{sWS+3}], s{s_stN} offen {store_mod}
        """)
    a(f"""
    s_lshl_b32 s{s_tmp}, s{s_q}, 6
    s_cmp_lt_u32 s{s_q}, 4
    s_cselect_b32 s{s_tmp2}, 0, 0x40000000
    v_add_u32 v{t0}, s{s_tmp}, v0
    v_lshrrev_b32 v{t1}, 4, v{t0}
    v_lshlrev_b32 v{t1}, 17, v{t1}
    v_bfe_u32 v{t2}, v{t0}, 2, 2
    v_lshlrev_b32 v{t2}, 11, v{t2}
    v_bfe_u32 v{t3}, v{t0}, 1, 1
    v_lshlrev_b32 v{t3}, 10, v{t3}
    v_add3_u32 v{t1}, v{t1}, v{t2}, v{t3}
    v_and_b32 v{t0}, 1, v{t0}
    v_lshlrev_b32 v{t0}, 9, v{t0}
    v_add3_u32 v{t1}, v{t1}, v{t0}, s{s_tmp2}
    v_add_u32 v{vA}, {VF + 28*16}, v{t1}
    v_mov_b32 v{vP+1}, {ONES2}
    v_mov_b32 v{vP+2}, {ONES2}
    v_mov_b32 v{vP+3}, {ONES2}
    buffer_store_dwordx4 v[{vP}:{vP+3}], v{vA}, s[{sWS}:{sWS+3}], s{s_stN} offen {store_mod}
    """)
    a(f"""
    s_cmp_eq_u32 s2, 0
    s_cselect_b32 s{s_tmp2}, 0, 0x40000000
    s_lshl_b32 s{s_tmp}, s{s_w}, 10
    s_add_u32 s{s_tmp}, s{s_tmp}, s{s_tmp2}
    v_lshlrev_b32 v{t0}, 4, v0
    v_add_u32 v{t0}, s{s_tmp}, v{t0}
    v_add_u32 v{t0}, {FLG}, v{t0}
    v_mov_b32 v{vZ}, 0
    v_mov_b32 v{vZ+1}, 0
    v_mov_b32 v{vZ+2}, 0
    v_mov_b32 v{vZ+3}, 0
    buffer_store_dwordx4 v[{vZ}:{vZ+3}], v{t0}, s[{sWS}:{sWS+3}], 0 offen {store_mod}
    v_add_u32 v{t0}, 4096, v{t0}
    buffer_store_dwordx4 v[{vZ}:{vZ+3}], v{t0}, s[{sWS}:{sWS+3}], 0 offen {store_mod}
    """)
    a(f"""
    s_lshl_b32 s{s_tmp}, s{s_rp}, 12
    s_add_u32 s{s_stT}, s{s_stN}, s{s_tmp}
    s_mov_b32 s{s_scale}, 1.0
    """)

    vXa = [V.alloc() for _ in range(4)]
    vWa = [V.alloc() for _ in range(3)]
    vWb = [V.alloc() for _ in range(3)]
    a(f"""
    s_lshl_b32 s{s_tmp}, s{s_rp}, 13
    v_and_b32 v{t0}, 31, v0
    v_lshlrev_b32 v{t0}, 7, v{t0}
    v_add_u32 v{t0}, s{s_tmp}, v{t0}
    v_lshrrev_b32 v{t1}, 5, v0
    v_bfe_u32 v{t2}, v0, 1, 3
    v_xor_b32 v{t1}, v{t1}, v{t2}
    v_lshlrev_b32 v{t1}, 4, v{t1}
    v_add_u32 v{vXa[0]}, v{t0}, v{t1}
    v_xor_b32 v{vXa[1]}, 32, v{vXa[0]}
    v_xor_b32 v{vXa[2]}, 64, v{vXa[0]}
    v_xor_b32 v{vXa[3]}, 96, v{vXa[0]}
    v_lshrrev_b32 v{t0}, 5, v0
    v_lshlrev_b32 v{t0}, 3, v{t0}
    v_bfe_u32 v{t1}, v0, 2, 2
    v_add_u32 v{t0}, v{t0}, v{t1}
    v_mul_u32_u24 v{t0}, 384, v{t0}
    v_bfe_u32 v{t1}, v0, 4, 1
    v_lshlrev_b32 v{t1}, 5, v{t1}
    v_and_b32 v{t2}, 3, v0
    v_lshlrev_b32 v{t2}, 3, v{t2}
    v_add3_u32 v{t0}, v{t0}, v{t1}, v{t2}
    v_add_u32 v{t0}, {WST0}, v{t0}
    v_bfe_u32 v{t1}, v0, 3, 1
    s_mul_i32 s{s_tmp}, s{s_cp}, 3
    """)
    for j in range(3):
        a(f"""
        s_add_u32 s{s_tmp2}, s{s_tmp}, {j}
        v_xor_b32 v{t2}, s{s_tmp2}, v{t1}
        v_lshlrev_b32 v{t2}, 6, v{t2}
        v_add_u32 v{vWa[j]}, v{t0}, v{t2}
        v_add_u32 v{vWb[j]}, 49152, v{vWa[j]}
        """)

    acc = [[V.alloc(16, 4) for j in range(3)] for _ in range(2)]
    fX = [[V.alloc(4, 4) for _ in range(2)] for _ in range(2)]
    fW = [[V.alloc(4, 4) for _ in range(3)] for _ in range(2)]
    vSt = [[V.alloc() for gg in range(4)] for j in range(3)]
    vD = V.alloc(8, 4)

    def reads(c, t, buf):
        st = c % 3
        out = []
        xo = XST(st)
        def w(j, u):
            if st == 2: return f"ds_read_b64_tr_b16 v[{fW[buf][j]+2*u}:{fW[buf][j]+2*u+1}], v{vWb[j]} offset:{(16*t+4*u)*384}"
            return f"ds_read_b64_tr_b16 v[{fW[buf][j]+2*u}:{fW[buf][j]+2*u+1}], v{vWa[j]} offset:{24576*st + (16*t+4*u)*384}"
        x = lambda aa: f"ds_read_b128 v[{fX[buf][aa]}:{fX[buf][aa]+3}], v{vXa[t]} offset:{xo + 4096*aa}"
        return [x(0), w(0, 0), w(0, 1), w(1, 0), w(1, 1), x(1), w(2, 0), w(2, 1)]

    def store_addr_T(j):
        a(f"s_add_u32 s{s_tmp}, s{s_T0}, {j}")
        a(f"s_lshl_b32 s{s_tmp}, s{s_tmp}, 3")
        for gg in range(4):
            a(f"""
            v_lshrrev_b32 v{t0}, 5, v0
            v_add_u32 v{t0}, {2*gg}, v{t0}
            v_add_u32 v{t0}, s{s_tmp}, v{t0}
            v_mul_u32_u24 v{t1}, 9363, v{t0}
            v_lshrrev_b32 v{t1}, 16, v{t1}
            v_mul_u32_u24 v{t2}, 7, v{t1}
            v_sub_u32 v{t0}, v{t0}, v{t2}
            v_lshlrev_b32 v{t1}, 17, v{t1}
            v_lshrrev_b32 v{t2}, 2, v{t0}
            v_lshlrev_b32 v{t2}, 10, v{t2}
            v_and_b32 v{t3}, 1, v{t0}
            v_lshlrev_b32 v{t3}, 9, v{t3}
            v_add3_u32 v{t1}, v{t1}, v{t2}, v{t3}
            v_bfe_u32 v{t0}, v{t0}, 1, 1
            v_lshlrev_b32 v{t0}, 3, v{t0}
            v_and_b32 v{t2}, 31, v0
            v_lshlrev_b32 v{t2}, 4, v{t2}
            v_add3_u32 v{vSt[j][gg]}, v{t1}, v{t0}, v{t2}
            """)

    def store_addr_N(j):
        a(f"""
        s_add_u32 s{s_tmp}, s{s_T0}, {j}
        s_sub_u32 s{s_tmp}, s{s_tmp}, 28
        s_lshl_b32 s{s_tmp}, s{s_tmp}, 5
        v_and_b32 v{t0}, 31, v0
        v_add_u32 v{t0}, s{s_tmp}, v{t0}
        v_mul_u32_u24 v{t1}, 2341, v{t0}
        v_lshrrev_b32 v{t1}, 16, v{t1}
        v_mul_u32_u24 v{t2}, 28, v{t1}
        v_sub_u32 v{t0}, v{t0}, v{t2}
        v_lshlrev_b32 v{t1}, 17, v{t1}
        v_lshrrev_b32 v{t2}, 5, v0
        v_lshlrev_b32 v{t2}, 5, v{t2}
        v_add_u32 v{t0}, v{t0}, v{t2}
        v_lshlrev_b32 v{t0}, 4, v{t0}
        v_add_u32 v{t0}, v{t0}, v{t1}
        v_add_u32 v{vSt[j][0]}, {VF}, v{t0}
        """)

    def variant(tag, forms):
        a.label(f"{name}_{tag}")
        vm0 = a.vm_n
        m = dict(marks)
        for j in range(3):
            (store_addr_T if forms[j] == "T" else store_addr_N)(j)
        a.wait_vm(m[0]); a("s_barrier")
        for r in reads(0, 0, 0): a(r)
        buf = 0
        pend = []
        for c in range(7):
            for t in range(4):
                last = (c == 6 and t == 3)
                a("s_waitcnt lgkmcnt(0)")
                if t == 3 and c < 6:
                    a.wait_vm(m[c + 1]); a("s_barrier")
                    if c + 3 <= 6:
                        dma_soff(c + 3)
                        pend = dma_ops(c + 3)
                nxt = [] if last else (reads(c, t + 1, buf ^ 1) if t < 3 else reads(c + 1, 0, buf ^ 1))
                k = 0
                for aa in range(2):
                    for j in range(3):
                        C = "0" if (c == 0 and t == 0) else f"v[{acc[aa][j]}:{acc[aa][j]+15}]"
                        X = f"v[{fX[buf][aa]}:{fX[buf][aa]+3}]"; W = f"v[{fW[buf][j]}:{fW[buf][j]+3}]"
                        A_, B_ = (W, X) if forms[j] == "T" else (X, W)
                        d = None
                        if pend: d = pend.pop(0); a(d[0])
                        a(f"v_mfma_f32_32x32x16_bf16 v[{acc[aa][j]}:{acc[aa][j]+15}], {A_}, {B_}, {C}")
                        if d:
                            a(d[1])
                            if not pend: m[c + 3 if t == 3 else c + 2] = a.vm_mark()
                        for r in nxt[2 * k: 2 * k + 2]: a(r)
                        k += 1
                buf ^= 1
        for j in range(3):
            if forms[j] == "T":
                a(f"""
                s_add_u32 s{s_tmp}, s{s_T0}, {j}
                s_cmp_lt_u32 s{s_tmp}, 14
                s_cselect_b32 s{s_tmp}, s{s_br}, 0
                s_cmp_eq_u32 s{s_tmp}, 1
                s_cselect_b32 s{s_scale}, {hex(f32bits(QSCALE))}, 1.0
                """)
                for aa in range(2):
                    for gg in range(4):
                        r = acc[aa][j] + 4 * gg
                        d = vD + 2 * ((aa * 4 + gg) % 4)
                        for i in range(4): a(f"v_mul_f32 v{r+i}, s{s_scale}, v{r+i}")
                        a(f"v_cvt_pk_bf16_f32 v{d}, v{r}, v{r+1}")
                        a(f"v_cvt_pk_bf16_f32 v{d+1}, v{r+2}, v{r+3}")
                        a(f"buffer_store_dwordx2 v[{d}:{d+1}], v{vSt[j][gg]}, s[{sWS}:{sWS+3}], s{s_stT} offen offset:{2048*aa} {store_mod}")
            else:
                for aa in range(2):
                    for s_ in range(2):
                        r = acc[aa][j] + 8 * s_
                        d = vD + 4 * s_
                        for i in range(4): a(f"v_cvt_pk_bf16_f32 v{d+i}, v{r+2*i}, v{r+2*i+1}")
                        a(f"buffer_store_dwordx4 v[{d}:{d+3}], v{vSt[j][0]}, s[{sWS}:{sWS+3}], s{s_stT} offen offset:{2048*aa + 1024*s_} {store_mod}")
        a("s_endpgm")
        a.vm_n = vm0

    a(f"""
    s_cmp_eq_u32 s{s_u}, 9
    s_cbranch_scc1 {name}_TNN
    s_cmp_gt_u32 s{s_u}, 9
    s_cbranch_scc1 {name}_NNN
    """)
    variant("TTT", "TTT")
    variant("TNN", "TNN")
    variant("NNN", "NNN")
    a.label(f"{name}_done")
    a("s_endpgm")
    text = kernel_head(name) + a.render()
    return text, kernel_desc(name, V.hi + 1), dict(grid=NWG, block=256, lds=LDS_BYTES, vgprs=V.hi + 1, nops=a.nnop)


if __name__ == "__main__":
    t, d, info = gen_k1()
    print(info, len(t.splitlines()))
```

```python
from asmgen import *
from common import *

NWG = 256
LOG2E = 1.4426950408889634
M_OFFSET = 60.0
L_LO, L_HI = 2.0 ** -80, 2.0 ** 64
WPH = 0
CNT = 2048
MX = CNT + 64
PH = 4352
RED = PH + 8 * 2304
LDS_BYTES = RED + 12 * 4096


def gen_k2(name="k2_kernel", spin_max=200000, force_exact=False, prio=True):
    a = Asm()
    V = Regs("v", 1, 255)
    sWS, sPH = 8, 12
    s_head, s_qb, s_w, s_g, s_c = 16, 17, 18, 19, 20
    s_t, s_t2, s_t3 = 21, 22, 23
    s_hi = 24
    s_k, s_v, s_q, s_of, s_att = 26, 27, 28, 29, 30
    s_kb = 31
    s_spin, s_log2e = 32, 33
    s_m0, s_m1 = 34, 36
    s_a = 38
    s_fl = 39
    s_i = 40
    WSR = f"s[{sWS}:{sWS+3}]"

    vL16 = V.alloc()
    vOF = [V.alloc() for _ in range(4)]
    t0, t1, t2, t3 = [V.alloc() for _ in range(4)]
    vT = V.alloc()
    Q = [V.alloc(8, 4) for _ in range(2)]
    KR = [V.alloc(8, 4) for _ in range(4)]
    VR = [V.alloc(8, 4) for _ in range(4)]
    O = [V.alloc(16, 4) for _ in range(2)]
    S = [V.alloc(16, 4) for _ in range(2)]
    P = V.alloc(8, 4)
    X = V.alloc(48, 4)

    a(f"""
    s_cmp_ge_u32 s2, {NWG}
    s_cbranch_scc1 {name}_done
    s_load_dwordx2 s[40:41], s[0:1], 72
    s_load_dwordx2 s[42:43], s[0:1], 16
    s_and_b32 s{s_t}, s2, 7
    s_lshl_b32 s{s_t}, s{s_t}, 1
    s_bfe_u32 s{s_t2}, s2, 0x10003
    s_add_u32 s{s_head}, s{s_t}, s{s_t2}
    s_lshr_b32 s{s_qb}, s2, 4
    v_lshrrev_b32 v{t0}, 6, v0
    v_lshlrev_b32 v{vT}, 2, v0
    v_readfirstlane_b32 s{s_w}, v{t0}
    v_and_b32 v0, 63, v0
    v_lshlrev_b32 v{vL16}, 4, v0
    s_mov_b32 s{s_hi}, 0
    s_mov_b32 s{s_hi+1}, -1
    s_mov_b32 s{s_att}, 0
    s_mov_b32 s{s_log2e}, {hex(f32bits(LOG2E))}
    s_and_b32 s{s_g}, s{s_w}, 1
    s_lshr_b32 s{s_c}, s{s_w}, 1
    s_lshl_b32 s{s_a}, s{s_head}, 17
    s_waitcnt lgkmcnt(0)
    """)
    srd(a, sWS, 40, 41, WS_SIZE, WS_BASE)
    a(f"""
    s_mov_b32 s{sPH}, s42
    s_mov_b32 s{sPH+1}, s43
    s_add_u32 s{s_t}, s{s_head}, 1
    s_mul_i32 s{sPH+2}, s{s_t}, 1568
    s_mov_b32 s{sPH+3}, 0x00020000
    s_mul_i32 s{s_t}, s{s_head}, 1568
    buffer_load_dword v{t3}, v{vT}, s[{sPH}:{sPH+3}], s{s_t} offen
    """)
    m_wphi = a.vm_mark()
    a(f"""
    s_lshl_b32 s{s_t}, s{s_qb}, 2
    s_lshl_b32 s{s_t2}, s{s_g}, 1
    s_add_u32 s{s_t}, s{s_t}, s{s_t2}
    s_lshl_b32 s{s_t}, s{s_t}, 11
    s_add_u32 s{s_q}, s{s_t}, s{s_a}
    s_add_u32 s{s_q}, s{s_q}, {BR_STRIDE + QF}
    s_add_u32 s{s_t}, s{s_a}, {BR_STRIDE + KF}
    s_lshl_b32 s{s_t2}, s{s_c}, 15
    s_add_u32 s{s_kb}, s{s_t}, s{s_t2}
    """)

    def load_q():
        for ab in range(2):
            for st in range(2):
                a(f"buffer_load_dwordx4 v[{Q[ab]+4*st}:{Q[ab]+4*st+3}], v{vL16}, {WSR}, s{s_q} offen offset:{2048*ab + 1024*st}")

    def kv_soff(j):
        a(f"s_add_u32 s{s_k}, s{s_kb}, {(j & ~1) * 2048}")
        a(f"s_add_u32 s{s_v}, s{s_kb}, {(j & ~1) * 2048 + (VF - KF)}")

    def load_k(j):
        return [f"buffer_load_dwordx4 v[{KR[j%4]+4*st}:{KR[j%4]+4*st+3}], v{vL16}, {WSR}, s{s_k} offen offset:{(j&1)*2048 + 1024*st}" for st in range(2)]
    def load_v(j):
        return [f"buffer_load_dwordx4 v[{VR[j%4]+4*st}:{VR[j%4]+4*st+3}], v{vL16}, {WSR}, s{s_v} offen offset:{(j&1)*2048 + 1024*st}" for st in range(2)]

    mk, mv = {}, {}
    def ring_prologue():
        for j in range(3):
            if j % 2 == 0: kv_soff(j)
            for x in load_k(j): a(x)
            mk[j] = a.vm_mark()
            for x in load_v(j): a(x)
            mv[j] = a.vm_mark()

    kf = X
    vfA = O[0]
    assert O[1] == O[0] + 16
    a(f"""
    s_cmp_lt_u32 s{s_w}, 4
    s_cbranch_scc1 {name}_pro_early
    s_and_b32 s{s_t}, s{s_w}, 3
    s_lshl_b32 s{s_t2}, s{s_qb}, 2
    s_add_u32 s{s_t}, s{s_t}, s{s_t2}
    s_lshl_b32 s{s_t}, s{s_t}, 11
    s_add_u32 s{s_t}, s{s_t}, s{s_a}
    s_add_u32 s{s_t}, s{s_t}, {KF}
    buffer_load_dwordx4 v[{kf}:{kf+3}], v{vL16}, {WSR}, s{s_t} offen
    buffer_load_dwordx4 v[{kf+4}:{kf+7}], v{vL16}, {WSR}, s{s_t} offen offset:1024
    s_cmp_lt_u32 s{s_w}, 6
    s_cbranch_scc0 {name}_pro_early
    s_lshl_b32 s{s_t}, s{s_qb}, 13
    s_add_u32 s{s_t}, s{s_t}, s{s_a}
    s_add_u32 s{s_t}, s{s_t}, {VF}
    s_add_u32 s{s_t2}, s{s_t}, 4096
    """)
    for rt in range(4):
        for st in range(2):
            r = vfA + 8 * rt + 4 * st
            a(f"buffer_load_dwordx4 v[{r}:{r+3}], v{vL16}, {WSR}, s{s_t if rt < 2 else s_t2} offen offset:{(rt&1)*2048 + 1024*st}")
    a.label(f"{name}_pro_early")
    load_q()
    K0 = KR[3]
    a(f"""
    s_add_u32 s{s_t}, s{s_a}, {BR_STRIDE + KF}
    buffer_load_dwordx4 v[{K0}:{K0+3}], v{vL16}, {WSR}, s{s_t} offen
    buffer_load_dwordx4 v[{K0+4}:{K0+7}], v{vL16}, {WSR}, s{s_t} offen offset:1024
    """)
    m_k0 = a.vm_mark()
    ring_prologue()
    n_after_wphi_min = a.vm_n - m_wphi - 10
    a(f"s_mul_i32 s{s_t}, s{s_head}, 7")
    for gg in range(4):
        a(f"""
        v_lshrrev_b32 v{t0}, 5, v0
        v_add_u32 v{t0}, {2*gg}, v{t0}
        v_add_u32 v{t0}, s{s_t}, v{t0}
        v_lshrrev_b32 v{t1}, 2, v{t0}
        v_lshlrev_b32 v{t1}, 10, v{t1}
        v_bfe_u32 v{t2}, v{t0}, 1, 1
        v_lshlrev_b32 v{t2}, 9, v{t2}
        v_and_b32 v{t0}, 1, v{t0}
        v_lshlrev_b32 v{t0}, 3, v{t0}
        v_add3_u32 v{t1}, v{t1}, v{t2}, v{t0}
        v_and_b32 v{t0}, 31, v0
        v_lshlrev_b32 v{t0}, 4, v{t0}
        v_add_u32 v{vOF[gg]}, v{t0}, v{t1}
        """)
    a(f"""
    v_mov_b32 v{t0}, 0x40000000
    s_mov_b64 exec, s[{s_hi}:{s_hi+1}]
    v_mov_b32 v{vOF[3]}, v{t0}
    s_mov_b64 exec, -1
    s_waitcnt vmcnt({n_after_wphi_min})
    v_add_u32 v{t0}, {WPH}, v{vT}
    ds_write_b32 v{t0}, v{t3}
    v_mov_b32 v{t1}, 0
    v_mov_b32 v{t2}, {CNT}
    ds_write_b32 v{t2}, v{t1}
    ds_write_b32 v{t2}, v{t1} offset:4
    """)
    a(f"""
    s_waitcnt lgkmcnt(0)
    s_barrier
    s_cmp_lt_u32 s{s_w}, 4
    s_cbranch_scc1 {name}_att_m
    """)

    def wphi_frags(dst):
        a(f"""
        v_lshrrev_b32 v{t0}, 5, v0
        v_lshlrev_b32 v{t0}, 2, v{t0}
        v_bfe_u32 v{t1}, v0, 2, 2
        v_add_u32 v{t0}, v{t0}, v{t1}
        v_mul_u32_u24 v{t0}, 56, v{t0}
        v_bfe_u32 v{t1}, v0, 4, 1
        v_lshlrev_b32 v{t1}, 5, v{t1}
        v_and_b32 v{t2}, 3, v0
        v_lshlrev_b32 v{t2}, 3, v{t2}
        v_add3_u32 v{t0}, v{t0}, v{t1}, v{t2}
        """)
        for st in range(2):
            for u in range(2):
                a(f"ds_read_b64_tr_b16 v[{dst+4*st+2*u}:{dst+4*st+2*u+1}], v{t0} offset:{WPH + (16*st + 8*u)*56}")

    def xhalf(op, r, tmp_a, tmp_b):
        a(f"v_mov_b32 v{tmp_a}, v{r}")
        a(f"v_mov_b32 v{tmp_b}, v{r}")
        a(f"v_permlane32_swap_b32 v{tmp_a}, v{tmp_b}")
        a(f"{op} v{r}, v{tmp_a}, v{tmp_b}")

    def features(xf, wf, p, e, phi):
        a(f"v_mfma_f32_32x32x16_bf16 v[{p}:{p+15}], v[{wf}:{wf+3}], v[{xf}:{xf+3}], 0")
        a(f"v_mfma_f32_32x32x16_bf16 v[{p}:{p+15}], v[{wf+4}:{wf+7}], v[{xf+4}:{xf+7}], v[{p}:{p+15}]")
        a(f"s_mov_b64 exec, s[{s_hi}:{s_hi+1}]")
        for i in range(4): a(f"v_mov_b32 v{p+12+i}, v{p+8+i}")
        a("s_mov_b64 exec, -1")
        a(f"v_max3_f32 v{t0}, v{p}, v{p+1}, v{p+2}")
        a(f"v_min3_f32 v{t1}, v{p}, v{p+1}, v{p+2}")
        for i in range(3, 15, 2):
            a(f"v_max3_f32 v{t0}, v{t0}, v{p+i}, v{p+i+1}")
            a(f"v_min3_f32 v{t1}, v{t1}, v{p+i}, v{p+i+1}")
        a(f"v_max_f32 v{t0}, v{t0}, v{p+15}")
        a(f"v_min_f32 v{t1}, v{t1}, v{p+15}")
        xhalf("v_max_f32", t0, t2, t3)
        xhalf("v_min_f32", t1, t2, t3)
        a(f"v_mul_f32 v{t0}, s{s_log2e}, v{t0}")
        a(f"v_mul_f32 v{t1}, s{s_log2e}, v{t1}")
        for sign in range(2):
            for i in range(16):
                if sign == 0: a(f"v_fma_f32 v{e+i}, v{p+i}, s{s_log2e}, -v{t0}")
                else:         a(f"v_fma_f32 v{e+i}, -v{p+i}, s{s_log2e}, v{t1}")
            for i in range(16): a(f"v_exp_f32 v{e+i}, v{e+i}")
            a(f"s_mov_b64 exec, s[{s_hi}:{s_hi+1}]")
            for i in range(4): a(f"v_mov_b32 v{e+12+i}, 0")
            a("s_mov_b64 exec, -1")
            sm = vT
            a(f"v_add_f32 v{sm}, v{e}, v{e+1}")
            a(f"v_add_f32 v{t2}, v{e+2}, v{e+3}")
            for i in range(4, 16, 2):
                a(f"v_add_f32 v{sm}, v{sm}, v{e+i}")
                a(f"v_add_f32 v{t2}, v{t2}, v{e+i+1}")
            a(f"v_add_f32 v{sm}, v{sm}, v{t2}")
            xhalf("v_add_f32", sm, t2, t3)
            a(f"v_rcp_f32 v{sm}, v{sm}")
            for i in range(16): a(f"v_mul_f32 v{e+i}, v{sm}, v{e+i}")
            for i in range(8): a(f"v_cvt_pk_bf16_f32 v{phi+8*sign+i}, v{e+2*i}, v{e+2*i+1}")

    def spin(label, off_sgpr, target):
        a(f"s_mov_b32 s{s_spin}, 0")
        a(f"v_mov_b32 v{t0}, 0")
        a.label(label)
        a(f"""
        buffer_load_dword v{t1}, v{t0}, {WSR}, s{off_sgpr} offen sc1
        s_waitcnt vmcnt(0)
        v_readfirstlane_b32 s{s_t}, v{t1}
        s_add_u32 s{s_spin}, s{s_spin}, 1
        s_cmp_ge_u32 s{s_t}, {target}
        s_cbranch_scc1 {label}_ok
        s_cmp_ge_u32 s{s_spin}, {spin_max}
        s_cbranch_scc1 {label}_ok
        s_sleep 4
        s_branch {label}
        """)
        a.label(label + "_ok")

    def signal(off_sgpr):
        a(f"""
        s_waitcnt vmcnt(0)
        v_mov_b32 v{t0}, 0
        v_mov_b32 v{t1}, 1
        s_mov_b64 exec, 1
        buffer_atomic_add v{t1}, v{t0}, {WSR}, s{off_sgpr} offen
        s_mov_b64 exec, -1
        """)

    wf = X + 8; phi = X + 16; pp = S[0]; ee = S[1]
    if prio: a("s_setprio 3")
    wphi_frags(wf)
    vm_save = a.vm_n
    a(f"s_waitcnt vmcnt(0) lgkmcnt(0)")
    features(kf, wf, pp, ee, phi)
    a(f"""
    s_and_b32 s{s_i}, s{s_w}, 3
    s_mul_i32 s{s_t}, s{s_i}, 2304
    v_and_b32 v{t0}, 31, v0
    v_mul_u32_u24 v{t0}, 72, v{t0}
    v_lshrrev_b32 v{t1}, 5, v0
    v_lshlrev_b32 v{t1}, 3, v{t1}
    v_add3_u32 v{t0}, v{t0}, v{t1}, s{s_t}
    """)
    for sign in range(2):
        for gg in range(4):
            r = phi + 8 * sign + 2 * gg
            a(f"ds_write_b64 v{t0}, v[{r}:{r+1}] offset:{PH + sign*4*2304 + 16*gg}")
    a(f"""
    s_waitcnt lgkmcnt(0)
    v_mov_b32 v{t1}, {CNT}
    v_mov_b32 v{t2}, 1
    s_mov_b64 exec, 1
    ds_add_u32 v{t1}, v{t2}
    s_mov_b64 exec, -1
    s_cmp_lt_u32 s{s_w}, 6
    s_cbranch_scc0 {name}_kv_done
    s_mov_b32 s{s_spin}, 0
    """)
    a.label(f"{name}_phi_wait")
    a(f"""
    ds_read_b32 v{t2}, v{t1}
    s_waitcnt lgkmcnt(0)
    v_readfirstlane_b32 s{s_t}, v{t2}
    s_add_u32 s{s_spin}, s{s_spin}, 1
    s_cmp_ge_u32 s{s_t}, 4
    s_cbranch_scc1 {name}_phi_ok
    s_cmp_ge_u32 s{s_spin}, {spin_max}
    s_cbranch_scc1 {name}_phi_ok
    s_sleep 1
    s_branch {name}_phi_wait
    """)
    a.label(f"{name}_phi_ok")
    af = S[1]
    acc = S[0]
    a(f"""
    s_and_b32 s{s_i}, s{s_w}, 1
    s_mul_i32 s{s_t}, s{s_i}, {4*2304}
    v_lshrrev_b32 v{t0}, 5, v0
    v_lshlrev_b32 v{t0}, 2, v{t0}
    v_bfe_u32 v{t1}, v0, 2, 2
    v_add_u32 v{t0}, v{t0}, v{t1}
    v_mul_u32_u24 v{t0}, 72, v{t0}
    v_bfe_u32 v{t1}, v0, 4, 1
    v_lshlrev_b32 v{t1}, 5, v{t1}
    v_and_b32 v{t2}, 3, v0
    v_lshlrev_b32 v{t2}, 3, v{t2}
    v_add3_u32 v{t0}, v{t0}, v{t1}, v{t2}
    v_add_u32 v{t0}, s{s_t}, v{t0}
    """)
    for rt in range(4):
        b = af + 8 * (rt & 1)
        for st in range(2):
            for u in range(2):
                a(f"ds_read_b64_tr_b16 v[{b+4*st+2*u}:{b+4*st+2*u+1}], v{t0} offset:{PH + rt*2304 + (16*st + 8*u)*72}")
        a("s_waitcnt lgkmcnt(0)")
        for st in range(2):
            C = "0" if (rt == 0 and st == 0) else f"v[{acc}:{acc+15}]"
            a(f"v_mfma_f32_32x32x16_bf16 v[{acc}:{acc+15}], v[{b+4*st}:{b+4*st+3}], v[{vfA+8*rt+4*st}:{vfA+8*rt+4*st+3}], {C}")
    a(f"""
    s_lshl_b32 s{s_t}, s{s_head}, 4
    s_add_u32 s{s_t}, s{s_t}, s{s_qb}
    s_lshl_b32 s{s_t}, s{s_t}, 1
    s_add_u32 s{s_t}, s{s_t}, s{s_i}
    s_lshl_b32 s{s_t}, s{s_t}, 12
    s_add_u32 s{s_t}, s{s_t}, {KVP}
    """)
    for qd in range(4):
        a(f"buffer_store_dwordx4 v[{acc+4*qd}:{acc+4*qd+3}], v{vL16}, {WSR}, s{s_t} offen offset:{1024*qd} sc1")
    a(f"s_lshl_b32 s{s_fl}, s{s_head}, 8\ns_add_u32 s{s_fl}, s{s_fl}, {FLG}")
    signal(s_fl)
    a.label(f"{name}_kv_done")
    a(f"""
    s_cmp_eq_u32 s{s_w}, 6
    s_cbranch_scc0 {name}_red_done
    s_lshl_b32 s{s_fl}, s{s_head}, 8
    s_add_u32 s{s_fl}, s{s_fl}, {FLG}
    """)
    spin(f"{name}_spin1", s_fl, 32)
    ld = S[0]
    assert S[1] == S[0] + 16
    a(f"""
    s_lshr_b32 s{s_t2}, s{s_qb}, 2
    s_lshr_b32 s{s_t3}, s{s_t2}, 1
    s_and_b32 s{s_t2}, s{s_t2}, 1
    s_lshl_b32 s{s_t}, s{s_head}, 17
    s_lshl_b32 s{s_i}, s{s_t3}, 12
    s_add_u32 s{s_t}, s{s_t}, s{s_i}
    s_lshl_b32 s{s_i}, s{s_t2}, 11
    s_add_u32 s{s_t}, s{s_t}, s{s_i}
    s_add_u32 s{s_t}, s{s_t}, {KVP}
    s_and_b32 s{s_i}, s{s_qb}, 3
    s_lshl_b32 s{s_i}, s{s_i}, 8
    v_lshrrev_b32 v{t0}, 4, v0
    v_lshlrev_b32 v{t0}, 15, v{t0}
    v_and_b32 v{t1}, 15, v0
    v_lshlrev_b32 v{t1}, 4, v{t1}
    v_add3_u32 v{t0}, v{t0}, v{t1}, s{s_i}
    """)
    for i in range(4):
        for qd in range(2):
            r = ld + 8 * i + 4 * qd
            a(f"buffer_load_dwordx4 v[{r}:{r+3}], v{t0}, {WSR}, s{s_t} offen offset:{1024*qd} sc1")
        if i < 3: a(f"s_add_u32 s{s_t}, s{s_t}, 8192")
    a("s_waitcnt vmcnt(0)")
    for k in range(8):
        a(f"v_add_f32 v{ld+k}, v{ld+k}, v{ld+8+k}")
        a(f"v_add_f32 v{ld+16+k}, v{ld+16+k}, v{ld+24+k}")
    for k in range(8): a(f"v_add_f32 v{ld+k}, v{ld+k}, v{ld+16+k}")
    for k in range(8):
        a(f"v_mov_b32 v{ld+8+k}, v{ld+k}")
    for k in range(8):
        a(f"v_permlane32_swap_b32 v{ld+k}, v{ld+8+k}")
    for k in range(8): a(f"v_add_f32 v{ld+k}, v{ld+k}, v{ld+8+k}")
    for k in range(8):
        a(f"v_mov_b32 v{ld+8+k}, v{ld+k}")
    for k in range(8):
        a(f"v_permlane16_swap_b32 v{ld+k}, v{ld+8+k}")
    for k in range(8): a(f"v_add_f32 v{ld+k}, v{ld+k}, v{ld+8+k}")
    for k in range(4): a(f"v_cvt_pk_bf16_f32 v{ld+16+k}, v{ld+2*k}, v{ld+2*k+1}")
    a(f"""
    s_lshr_b32 s{s_t2}, s{s_qb}, 2
    s_lshl_b32 s{s_t}, s{s_head}, 2
    s_add_u32 s{s_t}, s{s_t}, s{s_t2}
    s_lshl_b32 s{s_t}, s{s_t}, 10
    s_add_u32 s{s_t}, s{s_t}, {KVF}
    s_and_b32 s{s_i}, s{s_qb}, 3
    s_lshl_b32 s{s_i}, s{s_i}, 8
    s_add_u32 s{s_t}, s{s_t}, s{s_i}
    s_mov_b64 exec, 0xffff
    buffer_store_dwordx4 v[{ld+16}:{ld+19}], v{vL16}, {WSR}, s{s_t} offen sc1
    s_mov_b64 exec, -1
    s_add_u32 s{s_fl}, s{s_fl}, 4096
    """)
    signal(s_fl)
    a.label(f"{name}_red_done")
    a("s_waitcnt vmcnt(0) lgkmcnt(0)")
    a.vm_n = vm_save

    def patch_q(ab, m):
        a(f"""
        v_xor_b32 v{t0}, 0x80000000, v{m}
        v_and_b32 v{t1}, 0xffff0000, v{t0}
        v_sub_f32 v{t0}, v{t0}, v{t1}
        v_and_b32 v{t2}, 0xffff0000, v{t0}
        v_sub_f32 v{t0}, v{t0}, v{t2}
        v_lshrrev_b32 v{t1}, 16, v{t1}
        v_or_b32 v{t1}, v{t1}, v{t2}
        v_lshrrev_b32 v{t0}, 16, v{t0}
        s_mov_b64 exec, s[{s_hi}:{s_hi+1}]
        v_mov_b32 v{Q[ab]+6}, v{t1}
        v_mov_b32 v{Q[ab]+7}, v{t0}
        s_mov_b64 exec, -1
        """)

    def zero_q_pads():
        a(f"s_mov_b64 exec, s[{s_hi}:{s_hi+1}]")
        for ab in range(2):
            a(f"v_mov_b32 v{Q[ab]+6}, 0\nv_mov_b32 v{Q[ab]+7}, 0")
        a("s_mov_b64 exec, -1")

    def qk(Sd, Kf, ab):
        return [f"v_mfma_f32_32x32x16_bf16 v[{Sd}:{Sd+15}], v[{Kf}:{Kf+3}], v[{Q[ab]}:{Q[ab]+3}], 0",
                f"v_mfma_f32_32x32x16_bf16 v[{Sd}:{Sd+15}], v[{Kf+4}:{Kf+7}], v[{Q[ab]+4}:{Q[ab]+7}], v[{Sd}:{Sd+15}]"]

    def max16(dst, r, init=None):
        if init is None:
            a(f"v_max3_f32 v{dst}, v{r}, v{r+1}, v{r+2}")
            for i in range(3, 15, 2): a(f"v_max3_f32 v{dst}, v{dst}, v{r+i}, v{r+i+1}")
            a(f"v_max_f32 v{dst}, v{dst}, v{r+15}")
        else:
            for i in range(0, 16, 2): a(f"v_max3_f32 v{dst}, v{dst}, v{r+i}, v{r+i+1}")

    a.label(f"{name}_att_m")
    if prio:
        a(f"""
        s_cmp_lt_u32 s{s_w}, 4
        s_cbranch_scc1 {name}_prio_e
        s_setprio 0
        s_branch {name}_prio_x
        """)
        a.label(f"{name}_prio_e"); a("s_setprio 2"); a.label(f"{name}_prio_x")
    a.wait_vm(m_k0)
    zero_q_pads()
    for ab in range(2):
        for x in qk(S[ab], K0, ab): a(x)
    mA, mB = P, P + 1
    max16(mA, S[0]); max16(mB, S[1])
    for ab, m in enumerate((mA, mB)):
        xhalf("v_max_f32", m, t2, t3)
        a(f"v_add_f32 v{m}, {hex(f32bits(M_OFFSET))}, v{m}")
        a(f"v_and_b32 v{m}, 0xffff0000, v{m}")
        patch_q(ab, m)
    if force_exact:
        a(f"s_mov_b64 exec, s[{s_hi}:{s_hi+1}]")
        for ab in range(2): a(f"v_mov_b32 v{Q[ab]+6}, 0x0000c380")
        a("s_mov_b64 exec, -1")

    a.label(f"{name}_att_go")
    a.wait_vm(mk[0])
    for x in qk(S[0], KR[0], 0): a(x)
    for t in range(32):
        j = t >> 1
        Sc, Sn = S[t & 1], S[(t + 1) & 1]
        pend = []
        for slot in range(4):
            r = Sc + 4 * slot
            a(f"v_exp_f32 v{r}, v{r}")
            a(f"v_exp_f32 v{r+1}, v{r+1}")
            if slot == 0 and t > 0:
                tp = t - 1
                a(f"v_mfma_f32_32x32x16_bf16 v[{O[tp&1]}:{O[tp&1]+15}], v[{VR[(tp>>1)%4]+4}:{VR[(tp>>1)%4]+7}], v[{P+4}:{P+7}], v[{O[tp&1]}:{O[tp&1]+15}]")
            if slot in (1, 2) and t < 31:
                jn = (t + 1) >> 1
                if slot == 1 and (t + 1) % 2 == 0: a.wait_vm(mk[jn])
                a(qk(Sn, KR[jn % 4], (t + 1) & 1)[slot - 1])
            if slot == 3:
                if t % 2 == 0: a.wait_vm(mv[j])
                C = "0" if t < 2 else f"v[{O[t&1]}:{O[t&1]+15}]"
                a(f"v_mfma_f32_32x32x16_bf16 v[{O[t&1]}:{O[t&1]+15}], v[{VR[j%4]}:{VR[j%4]+3}], v[{P}:{P+3}], {C}")
            if t % 2 == 0 and j + 3 <= 15:
                jj = j + 3
                if slot == 1:
                    if jj % 2 == 0: kv_soff(jj)
                    elif jj == 3: kv_soff(jj)
                    for x in load_k(jj): a(x)
                    mk[jj] = a.vm_mark()
                if slot == 2:
                    for x in load_v(jj): a(x)
                    mv[jj] = a.vm_mark()
            a(f"v_exp_f32 v{r+2}, v{r+2}")
            a(f"v_exp_f32 v{r+3}, v{r+3}")
            a(f"v_cvt_pk_bf16_f32 v{P+2*slot}, v{r}, v{r+1}")
            a(f"v_cvt_pk_bf16_f32 v{P+2*slot+1}, v{r+2}, v{r+3}")
    a(f"s_nop 0\nv_mfma_f32_32x32x16_bf16 v[{O[1]}:{O[1]+15}], v[{VR[15%4]+4}:{VR[15%4]+7}], v[{P+4}:{P+7}], v[{O[1]}:{O[1]+15}]")

    vR = X
    a(f"""
    s_mul_i32 s{s_t}, s{s_g}, {6*4096}
    v_add_u32 v{vR}, s{s_t}, v{vL16}
    s_cmp_lt_u32 s{s_w}, 4
    s_cbranch_scc0 {name}_fin_late
    s_lshl_b32 s{s_t}, s{s_c}, 12
    v_add_u32 v{vR}, s{s_t}, v{vR}
    """)
    for ab in range(2):
        for qd in range(4):
            a(f"ds_write_b128 v{vR}, v[{O[ab]+4*qd}:{O[ab]+4*qd+3}] offset:{RED + ab*3*4096 + 1024*qd}")
    a(f"""
    s_cmp_eq_u32 s{s_att}, 0
    s_cbranch_scc0 {name}_aend_done
    s_lshl_b32 s{s_t}, s{s_qb}, 2
    s_add_u32 s{s_i}, s{s_t}, s{s_w}
    s_lshl_b32 s{s_t}, s{s_i}, 11
    s_add_u32 s{s_t}, s{s_t}, s{s_a}
    s_add_u32 s{s_t}, s{s_t}, {QF}
    buffer_load_dwordx4 v[{kf+8}:{kf+11}], v{vL16}, {WSR}, s{s_t} offen
    buffer_load_dwordx4 v[{kf+12}:{kf+15}], v{vL16}, {WSR}, s{s_t} offen offset:1024
    """)
    qf = kf + 8; wf2 = kf + 16; phi2 = kf + 24
    kvf = O[0]
    wphi_frags(wf2)
    a("s_waitcnt vmcnt(0) lgkmcnt(0)")
    a(f"s_mov_b64 exec, s[{s_hi}:{s_hi+1}]\nv_mov_b32 v{qf+6}, 0\nv_mov_b32 v{qf+7}, 0\ns_mov_b64 exec, -1")
    features(qf, wf2, S[0], S[1], phi2)
    a(f"s_lshl_b32 s{s_fl}, s{s_head}, 8\ns_add_u32 s{s_fl}, s{s_fl}, {FLG + 4096}")
    spin(f"{name}_spin2", s_fl, 16)
    a(f"s_lshl_b32 s{s_t}, s{s_head}, 12\ns_add_u32 s{s_t}, s{s_t}, {KVF}")
    for f in range(4):
        a(f"buffer_load_dwordx4 v[{kvf+4*f}:{kvf+4*f+3}], v{vL16}, {WSR}, s{s_t} offen offset:{1024*f} sc1")
    a("s_waitcnt vmcnt(0)")
    accA = S[0]
    for f in range(4):
        C = "0" if f == 0 else f"v[{accA}:{accA+15}]"
        a(f"v_mfma_f32_32x32x16_bf16 v[{accA}:{accA+15}], v[{kvf+4*f}:{kvf+4*f+3}], v[{phi2+4*f}:{phi2+4*f+3}], {C}")

    def finish_tile(acc, eps, soff, check):
        a(f"v_mov_b32 v{t0}, v{acc+12}")
        a(f"v_mov_b32 v{t1}, v{acc+12}")
        a(f"v_permlane32_swap_b32 v{t0}, v{t1}")
        if eps: a(f"v_add_f32 v{t1}, {hex(f32bits(eps))}, v{t1}")
        if check:
            a(f"v_mov_b32 v{t2}, {hex(f32bits(L_LO))}")
            a(f"v_mov_b32 v{t3}, {hex(f32bits(L_HI))}")
            a(f"v_cmp_ge_f32 s[{s_m0}:{s_m0+1}], v{t1}, v{t2}")
            a(f"v_cmp_le_f32 s[{s_m1}:{s_m1+1}], v{t1}, v{t3}")
        a(f"v_rcp_f32 v{t0}, v{t1}")
        if check:
            a(f"s_and_b64 s[{s_m0}:{s_m0+1}], s[{s_m0}:{s_m0+1}], s[{s_m1}:{s_m1+1}]")
        for i in range(16): a(f"v_mul_f32 v{acc+i}, v{t0}, v{acc+i}")
        for gg in range(4):
            d = P + 2 * gg
            a(f"v_cvt_pk_bf16_f32 v{d}, v{acc+4*gg}, v{acc+4*gg+1}")
            a(f"v_cvt_pk_bf16_f32 v{d+1}, v{acc+4*gg+2}, v{acc+4*gg+3}")
            a(f"buffer_store_dwordx2 v[{d}:{d+1}], v{vOF[gg]}, {WSR}, s{soff} offen")

    a(f"s_mul_i32 s{s_of}, s{s_i}, 28672\ns_add_u32 s{s_of}, s{s_of}, {OF}")
    finish_tile(accA, 1e-6, s_of, False)
    a.label(f"{name}_aend_done")
    a(f"s_waitcnt lgkmcnt(0)\ns_barrier\ns_branch {name}_fin_join")

    a.label(f"{name}_fin_late")
    def late(own):
        oth = 1 - own
        for qd in range(4):
            a(f"ds_write_b128 v{vR}, v[{O[oth]+4*qd}:{O[oth]+4*qd+3}] offset:{RED + oth*3*4096 + 2*4096 + 1024*qd}")
        a(f"""
        s_lshl_b32 s{s_t}, s{s_qb}, 2
        s_lshl_b32 s{s_t2}, s{s_g}, 1
        s_add_u32 s{s_t}, s{s_t}, s{s_t2}
        s_add_u32 s{s_t}, s{s_t}, {own}
        s_mul_i32 s{s_of}, s{s_t}, 28672
        s_add_u32 s{s_of}, s{s_of}, {OF + 2*MB}
        s_waitcnt lgkmcnt(0)
        s_barrier
        """)
        bufs = [S[0], S[1], O[oth]]
        for src in range(3):
            for qd in range(4):
                a(f"ds_read_b128 v[{bufs[src]+4*qd}:{bufs[src]+4*qd+3}], v{vR} offset:{RED + own*3*4096 + src*4096 + 1024*qd}")
        for src in range(3):
            a(f"s_waitcnt lgkmcnt({8 - 4*src})")
            for i in range(16): a(f"v_add_f32 v{O[own]+i}, v{O[own]+i}, v{bufs[src]+i}")
        finish_tile(O[own], 0.0, s_of, True)
        a(f"""
        s_cmp_eq_u64 s[{s_m0}:{s_m0+1}], exec
        s_cbranch_scc1 {name}_fin_join
        v_mov_b32 v{t0}, {CNT}
        v_mov_b32 v{t1}, 1
        ds_write_b32 v{t0}, v{t1} offset:4
        s_waitcnt lgkmcnt(0)
        s_branch {name}_fin_join
        """)
    a(f"s_cmp_eq_u32 s{s_c}, 2\ns_cbranch_scc0 {name}_fin_late_b")
    late(0)
    a.label(f"{name}_fin_late_b")
    late(1)

    a.label(f"{name}_fin_join")
    a(f"""
    s_barrier
    v_mov_b32 v{t0}, {CNT}
    ds_read_b32 v{t1}, v{t0} offset:4
    s_waitcnt lgkmcnt(0)
    v_readfirstlane_b32 s{s_t}, v{t1}
    s_cmp_eq_u32 s{s_t}, 0
    s_cbranch_scc1 {name}_done
    s_cmp_eq_u32 s{s_att}, 0
    s_cbranch_scc0 {name}_done
    """)
    a(f"s_mov_b32 s{s_att}, 1\ns_waitcnt vmcnt(0)")
    zero_q_pads()
    a(f"""
    v_mov_b32 v{mA}, 0xff800000
    v_mov_b32 v{mB}, 0xff800000
    s_mov_b32 s{s_i}, 0
    """)
    a.label(f"{name}_ex_loop")
    a(f"""
    s_lshl_b32 s{s_t}, s{s_i}, 11
    s_add_u32 s{s_t}, s{s_t}, s{s_kb}
    buffer_load_dwordx4 v[{K0}:{K0+3}], v{vL16}, {WSR}, s{s_t} offen
    buffer_load_dwordx4 v[{K0+4}:{K0+7}], v{vL16}, {WSR}, s{s_t} offen offset:1024
    s_waitcnt vmcnt(0)
    """)
    for ab in range(2):
        for x in qk(S[ab], K0, ab): a(x)
    max16(mA, S[0], init=True); max16(mB, S[1], init=True)
    a(f"""
    s_add_u32 s{s_i}, s{s_i}, 1
    s_cmp_lt_u32 s{s_i}, 16
    s_cbranch_scc1 {name}_ex_loop
    """)
    for m in (mA, mB): xhalf("v_max_f32", m, t2, t3)
    a(f"""
    s_lshl_b32 s{s_t}, s{s_g}, 10
    s_lshl_b32 s{s_t2}, s{s_c}, 7
    v_and_b32 v{t0}, 31, v0
    v_lshlrev_b32 v{t0}, 2, v{t0}
    v_add_u32 v{t0}, s{s_t}, v{t0}
    v_add_u32 v{t1}, s{s_t2}, v{t0}
    ds_write_b32 v{t1}, v{mA} offset:{MX}
    ds_write_b32 v{t1}, v{mB} offset:{MX + 512}
    s_waitcnt lgkmcnt(0)
    s_barrier
    """)
    for ab, m in enumerate((mA, mB)):
        for cc in range(4):
            a(f"ds_read_b32 v{S[0]+4*ab+cc}, v{t0} offset:{MX + 512*ab + 128*cc}")
    a("s_waitcnt lgkmcnt(0)")
    for ab, m in enumerate((mA, mB)):
        b = S[0] + 4 * ab
        a(f"v_max3_f32 v{m}, v{b}, v{b+1}, v{b+2}")
        a(f"v_max_f32 v{m}, v{m}, v{b+3}")
    for ab, m in enumerate((mA, mB)): patch_q(ab, m)
    a(f"""
    v_mov_b32 v{t0}, {CNT}
    v_mov_b32 v{t1}, 0
    s_barrier
    ds_write_b32 v{t0}, v{t1} offset:4
    s_waitcnt lgkmcnt(0)
    s_barrier
    """)
    vm_keep = a.vm_n
    ring_prologue()
    a(f"s_waitcnt vmcnt(0)\ns_branch {name}_att_go")
    a.label(f"{name}_done")
    a("s_endpgm")
    text = kernel_head(name) + a.render()
    return text, kernel_desc(name, V.hi + 1), dict(grid=NWG, block=512, lds=LDS_BYTES, vgprs=V.hi + 1, nops=a.nnop)


if __name__ == "__main__":
    t, d, info = gen_k2()
    print(info, len(t.splitlines()))
```

```python
from asmgen import *
from common import *

NWG = 224
LDS_BYTES = 448 * 128


def gen_k3(name="k3_kernel", store_mod=""):
    a = Asm()
    V = Regs("v", 1, 255)
    sWO, sWS, sOUT = 8, 12, 16
    s_br, s_rb, s_ct, s_w, s_t, s_t2, s_so, s_o = 20, 21, 22, 23, 24, 25, 26, 27
    a(f"""
    s_cmp_ge_u32 s2, {NWG}
    s_cbranch_scc1 {name}_done
    s_load_dwordx2 s[40:41], s[0:1], 24
    s_load_dwordx2 s[42:43], s[0:1], 48
    s_load_dwordx2 s[44:45], s[0:1], 56
    s_load_dwordx2 s[46:47], s[0:1], 72
    s_and_b32 s{s_t}, s2, 7
    s_lshr_b32 s{s_t2}, s2, 3
    s_lshr_b32 s{s_br}, s{s_t}, 2
    s_and_b32 s{s_t}, s{s_t}, 3
    s_lshl_b32 s{s_t}, s{s_t}, 2
    s_and_b32 s{s_rb}, s{s_t2}, 3
    s_add_u32 s{s_rb}, s{s_rb}, s{s_t}
    s_lshr_b32 s{s_ct}, s{s_t2}, 2
    v_lshrrev_b32 v1, 6, v0
    s_nop 0
    v_readfirstlane_b32 s{s_w}, v1
    v_and_b32 v0, 63, v0
    s_waitcnt lgkmcnt(0)
    s_cmp_eq_u32 s{s_br}, 0
    s_cselect_b32 s40, s40, s42
    s_cselect_b32 s41, s41, s43
    """)
    srd(a, sWO, 40, 41, WO_BYTES)
    srd(a, sWS, 46, 47, WS_SIZE, WS_BASE)
    srd(a, sOUT, 44, 45, OUT_BYTES)
    vD, vL16, t0, t1, t2 = [V.alloc() for _ in range(5)]
    of = V.alloc(112, 4)
    a(f"""
    v_lshrrev_b32 v{t0}, 3, v0
    v_mul_u32_u24 v{t0}, 896, v{t0}
    v_bfe_u32 v{t1}, v0, 4, 1
    v_lshlrev_b32 v{t1}, 2, v{t1}
    v_and_b32 v{t2}, 7, v0
    v_xor_b32 v{t1}, v{t1}, v{t2}
    v_lshlrev_b32 v{t1}, 4, v{t1}
    v_add_u32 v{vD}, v{t0}, v{t1}
    v_lshlrev_b32 v{vL16}, 4, v0
    s_lshl_b32 s{s_t}, s{s_rb}, 2
    s_add_u32 s{s_t}, s{s_t}, s{s_w}
    s_mul_i32 s{s_o}, s{s_t}, 28672
    s_mul_i32 s{s_t}, s{s_br}, {2*MB}
    s_add_u32 s{s_o}, s{s_o}, s{s_t}
    s_add_u32 s{s_o}, s{s_o}, {OF}
    s_mul_i32 s{s_so}, s{s_w}, {8*896}
    s_lshl_b32 s{s_t}, s{s_ct}, 7
    s_add_u32 s{s_so}, s{s_so}, s{s_t}
    s_lshl_b32 s{s_t2}, s{s_w}, 10
    """)
    marks = []
    for st in range(7):
        for i in range(2):
            r0 = 64 * st + 32 * i
            a(f"s_add_u32 m0, s{s_t2}, {r0*128}")
            a(f"s_add_u32 s{s_t}, s{s_so}, {r0*896}")
            a(f"buffer_load_dwordx4 v{vD}, s[{sWO}:{sWO+3}], s{s_t} offen lds")
        a(f"s_add_u32 s{s_t}, s{s_o}, {4096*st}")
        for k in range(4):
            t = 4 * st + k
            a(f"buffer_load_dwordx4 v[{of+4*t}:{of+4*t+3}], v{vL16}, s[{sWS}:{sWS+3}], s{s_t} offen offset:{1024*k}")
        marks.append(a.vm_mark())
    vW = [V.alloc() for _ in range(2)]
    a(f"""
    v_lshrrev_b32 v{t0}, 5, v0
    v_lshlrev_b32 v{t0}, 3, v{t0}
    v_bfe_u32 v{t1}, v0, 2, 2
    v_add_u32 v{t0}, v{t0}, v{t1}
    v_lshlrev_b32 v{t0}, 7, v{t0}
    v_bfe_u32 v{t1}, v0, 4, 1
    v_lshlrev_b32 v{t1}, 5, v{t1}
    v_and_b32 v{t2}, 3, v0
    v_lshlrev_b32 v{t2}, 3, v{t2}
    v_add3_u32 v{t0}, v{t0}, v{t1}, v{t2}
    v_bfe_u32 v{t1}, v0, 3, 1
    v_lshlrev_b32 v{t2}, 6, v{t1}
    v_add_u32 v{vW[0]}, v{t0}, v{t2}
    v_xor_b32 v{t1}, 1, v{t1}
    v_lshlrev_b32 v{t2}, 6, v{t1}
    v_add_u32 v{vW[1]}, v{t0}, v{t2}
    """)
    vO = V.alloc()
    a(f"""
    s_lshl_b32 s{s_t}, s{s_rb}, 2
    s_add_u32 s{s_t}, s{s_t}, s{s_w}
    s_mul_i32 s{s_t}, s{s_t}, {32*1792}
    s_mul_i32 s{s_t2}, s{s_br}, 896
    s_add_u32 s{s_t}, s{s_t}, s{s_t2}
    s_lshl_b32 s{s_t2}, s{s_ct}, 7
    s_add_u32 s{s_so}, s{s_t}, s{s_t2}
    v_and_b32 v{t0}, 31, v0
    v_mul_u32_u24 v{t0}, 1792, v{t0}
    v_lshrrev_b32 v{t1}, 5, v0
    v_lshlrev_b32 v{t1}, 4, v{t1}
    v_add_u32 v{vO}, v{t0}, v{t1}
    """)
    acc = [V.alloc(16, 4) for _ in range(2)]
    fW = [[V.alloc(4, 4) for _ in range(2)] for _ in range(2)]
    def reads(t, buf):
        return [f"ds_read_b64_tr_b16 v[{fW[buf][jj]+2*u}:{fW[buf][jj]+2*u+1}], v{vW[jj]} offset:{(16*t+4*u)*128}" for jj in range(2) for u in range(2)]
    buf = 0
    for st in range(7):
        a.wait_vm(marks[st]); a("s_barrier")
        for r in reads(4 * st, buf): a(r)
        for k in range(4):
            t = 4 * st + k
            a("s_waitcnt lgkmcnt(0)")
            nxt = reads(t + 1, buf ^ 1) if k < 3 else []
            for jj in range(2):
                C = "0" if t == 0 else f"v[{acc[jj]}:{acc[jj]+15}]"
                a(f"v_mfma_f32_32x32x16_bf16 v[{acc[jj]}:{acc[jj]+15}], v[{fW[buf][jj]}:{fW[buf][jj]+3}], v[{of+4*t}:{of+4*t+3}], {C}")
                for r in nxt[2*jj:2*jj+2]: a(r)
            buf ^= 1
    Pk = V.alloc(8, 4)
    for jj in range(2):
        for gg in range(4):
            a(f"v_cvt_pk_bf16_f32 v{Pk+2*gg}, v{acc[jj]+4*gg}, v{acc[jj]+4*gg+1}")
            a(f"v_cvt_pk_bf16_f32 v{Pk+2*gg+1}, v{acc[jj]+4*gg+2}, v{acc[jj]+4*gg+3}")
        for k in (0, 2):
            a(f"v_permlane32_swap_b32 v{Pk+2*k}, v{Pk+2*k+2}")
            a(f"v_permlane32_swap_b32 v{Pk+2*k+1}, v{Pk+2*k+3}")
        for k in (0, 2):
            a(f"buffer_store_dwordx4 v[{Pk+2*k}:{Pk+2*k+3}], v{vO}, s[{sOUT}:{sOUT+3}], s{s_so} offen offset:{64*jj + 16*k} {store_mod}")
    a.label(f"{name}_done")
    a("s_endpgm")
    text = kernel_head(name) + a.render()
    return text, kernel_desc(name, V.hi + 1), dict(grid=NWG, block=256, lds=LDS_BYTES, vgprs=V.hi + 1, nops=a.nnop)


if __name__ == "__main__":
    t, d, info = gen_k3()
    print(info, len(t.splitlines()))
```

```python
import sys
from gen import *
from asmgen import kernel_head, kernel_desc
EMPTY = (kernel_head("e_kernel") + "    s_endpgm\n", kernel_desc("e_kernel", 8), dict(grid=256, block=64, lds=0))
def write(path, parts, launches=None):
    txt = build(parts)
    if launches is not None:
        lines = txt.split("\n")
        body = [l for l in lines if not l.startswith("; @launch")]
        d = {n: i for n, (t, dd, i) in parts}
        ll = [f"; @launch kernel={n} grid=({d[n]['grid']},1,1) block=({d[n]['block']},1,1) lds={d[n]['lds']}" for n in launches]
        k = next(i for i, l in enumerate(body) if not l.startswith(";"))
        txt = "\n".join(body[:k] + ll + body[k:])
    open(path, "w").write(txt)
if __name__ == "__main__":
    p = all_parts("123")
    pe = p + [("e_kernel", EMPTY)]
    write("v_base.s", p)
    write("v_e1.s", pe, ["k1_kernel", "k2_kernel", "k3_kernel", "e_kernel"])
    write("v_e4.s", pe, ["k1_kernel", "k2_kernel", "k3_kernel"] + ["e_kernel"] * 4)
    write("v_pre4.s", pe, ["e_kernel"] * 4 + ["k1_kernel", "k2_kernel", "k3_kernel"])
    write("v_k2x2.s", p, ["k1_kernel", "k2_kernel", "k1_kernel", "k2_kernel", "k3_kernel"])
    write("v_k3x2.s", p, ["k1_kernel", "k2_kernel", "k3_kernel", "k3_kernel"])
```

```python
import re

TRANS = ("v_exp_", "v_log_", "v_rcp_", "v_rsq_", "v_sqrt_", "v_sin_", "v_cos_")
RMW_DST = ("v_fmac_", "v_mac_", "v_pk_fmac", "v_dot2c", "v_writelane")

_REG = re.compile(r"^(-|\|)?(abs\()?([vsa])(\d+|\[(\d+):(\d+)\])\)?\|?$")


def regs_of(tok):
    tok = tok.strip()
    if tok in ("vcc", "exec"):
        return {(tok, 0), (tok, 1)}
    if tok in ("vcc_lo", "exec_lo"):
        return {(tok[:-3], 0)}
    if tok in ("vcc_hi", "exec_hi"):
        return {(tok[:-3], 1)}
    if tok == "m0":
        return {("m0", 0)}
    m = _REG.match(tok)
    if not m:
        return set()
    k = m.group(3)
    if m.group(5) is not None:
        return {(k, i) for i in range(int(m.group(5)), int(m.group(6)) + 1)}
    return {(k, int(m.group(4)))}


class Ins:
    __slots__ = ("text", "op", "kind", "rd", "wr", "passes", "srcc", "dst_tok", "srcc_tok", "wide_store", "lds_dma", "nops", "dpp")

    def __init__(self, text):
        self.text = text
        body = text.split(";")[0].strip()
        parts = body.split(None, 1)
        self.op = op = parts[0]
        rest = parts[1] if len(parts) > 1 else ""
        toks = [t.strip() for t in rest.split(",")] if rest else []
        mods = []
        if toks:
            last = toks[-1].split()
            toks[-1] = last[0] if last else ""
            mods = last[1:]
        self.rd, self.wr = set(), set()
        self.passes = 0
        self.srcc = set()
        self.dst_tok = self.srcc_tok = None
        self.wide_store = False
        self.lds_dma = False
        self.nops = 1
        self.dpp = any(m.startswith(("row_", "quad_perm", "wave_", "row_bcast")) for m in mods)
        R = regs_of
        if op == "s_nop":
            self.kind = "nop"
            self.nops = int(toks[0], 0) + 1
        elif op.startswith("v_mfma"):
            self.kind = "mfma"
            self.passes = 8 if "32x32" in op else 4
            self.wr = R(toks[0]); self.dst_tok = toks[0]
            self.srcc = R(toks[3]); self.srcc_tok = toks[3]
            self.rd = R(toks[1]) | R(toks[2])
        elif op.startswith("v_"):
            self.kind = "trans" if op.startswith(TRANS) else "valu"
            if op.startswith("v_permlane"):
                self.kind = "permlane"
                self.rd = R(toks[0]) | R(toks[1]); self.wr = set(self.rd)
            elif op.startswith(("v_readfirstlane", "v_readlane")):
                self.kind = "readlane"
                self.wr = R(toks[0])
                for t in toks[1:]: self.rd |= R(t)
            elif op.startswith(("v_add_co", "v_sub_co", "v_addc_co", "v_subb_co", "v_subrev_co")):
                self.wr = R(toks[0]) | R(toks[1])
                for t in toks[2:]: self.rd |= R(t)
            else:
                self.wr = R(toks[0])
                for t in toks[1:]: self.rd |= R(t)
                if op.startswith(RMW_DST): self.rd |= self.wr
                if any("UNUSED_PRESERVE" in m for m in mods): self.rd |= self.wr
        elif op.startswith("ds_"):
            self.kind = "ds"
            if op.startswith(("ds_read", "ds_bpermute", "ds_permute", "ds_swizzle")) or "_rtn" in op:
                self.wr = R(toks[0])
                for t in toks[1:]: self.rd |= R(t)
            else:
                for t in toks: self.rd |= R(t)
        elif op.startswith(("buffer_", "global_")):
            self.kind = "vmem"
            is_store = "store" in op
            is_atomic = "atomic" in op
            self.lds_dma = "lds" in mods or "_lds_" in op
            if op.startswith(("buffer_wbl2", "buffer_inv")):
                pass
            elif self.lds_dma:
                for t in toks: self.rd |= R(t)
                self.rd |= {("m0", 0)}
            elif is_store or (is_atomic and "sc0" not in mods):
                for t in toks: self.rd |= R(t)
                self.wide_store = is_store and op.endswith(("x3", "x4"))
                if self.wide_store:
                    self.srcc = R(toks[0]) if op.startswith("buffer_") else R(toks[1])
            elif is_atomic:
                self.wr = R(toks[0])
                for t in toks: self.rd |= R(t)
            else:
                self.wr = R(toks[0])
                for t in toks[1:]: self.rd |= R(t)
        elif op.startswith("s_"):
            self.kind = "salu"
            if op.startswith(("s_cbranch", "s_branch", "s_setpc", "s_endpgm")):
                self.kind = "branch"
            elif op.startswith(("s_waitcnt", "s_barrier", "s_setprio", "s_sleep", "s_sethalt")):
                pass
            elif op.startswith("s_cmp") or op.startswith("s_bitcmp"):
                for t in toks: self.rd |= R(t)
            elif op.startswith(("s_load", "s_memtime", "s_memrealtime", "s_buffer_load")):
                self.kind = "smem"
                self.wr = R(toks[0])
                for t in toks[1:]: self.rd |= R(t)
            else:
                self.wr = R(toks[0])
                for t in toks[1:]: self.rd |= R(t)
                if "saveexec" in op: self.wr |= R("exec"); self.rd |= R("exec")
                if op.startswith(("s_addk", "s_mulk")): self.rd |= self.wr
        else:
            raise ValueError("unknown instruction: " + text)


VALU_KINDS = ("valu", "trans", "permlane", "readlane")


def required(prev, cur):
    need = 0
    pv = prev.kind in VALU_KINDS
    cv = cur.kind in VALU_KINDS
    pw_v = {r for r in prev.wr if r[0] in "va"}
    pw_s = {r for r in prev.wr if r[0] in ("s", "vcc", "exec")}
    if pv:
        if cur.kind == "mfma" and pw_v & (cur.rd | cur.srcc): need = max(need, 2)
        if cur.kind == "permlane" and pw_v & cur.rd: need = max(need, 2)
        if cur.dpp and pw_v & cur.rd: need = max(need, 2)
        if cur.kind == "readlane" and pw_v & cur.rd: need = max(need, 1)
        if prev.kind == "trans" and cv and cur.kind != "trans" and pw_v & cur.rd: need = max(need, 1)
        if pw_s:
            if cv and pw_s & cur.rd: need = max(need, 4 if cur.kind == "readlane" else 2)
            if cur.kind == "vmem" and pw_s & cur.rd: need = max(need, 5)
            if cur.kind in ("salu", "smem", "branch") and pw_s & cur.rd: need = max(need, 1)
    if prev.kind == "mfma":
        big = prev.passes == 8
        if cur.kind == "mfma":
            if prev.wr & cur.rd: need = max(need, 12 if big else 8)
            if prev.wr & cur.srcc and not (prev.dst_tok == cur.srcc_tok and prev.passes == cur.passes):
                need = max(need, 10 if big else 6)
            if prev.wr & cur.wr and not (prev.wr & cur.srcc) and prev.passes != cur.passes:
                need = max(need, 10 if big else 6)
        elif cv or cur.kind in ("vmem", "ds"):
            if prev.wr & (cur.rd | cur.wr): need = max(need, 12 if big else 8)
            if cv and prev.srcc & cur.wr: need = max(need, 7 if big else 3)
    if prev.kind == "salu" and ("m0", 0) in prev.wr and cur.lds_dma: need = max(need, 1)
    if prev.kind == "vmem" and prev.wide_store and prev.srcc & cur.wr:
        need = max(need, 2 if cv else 1)
    return need


def worst_case(prev):
    if prev.kind == "mfma": return 12 if prev.passes == 8 else 8
    if prev.kind in VALU_KINDS:
        return 5 if any(r[0] in ("s", "vcc", "exec") for r in prev.wr) else 2
    if prev.kind == "vmem" and prev.wide_store: return 2
    if prev.kind == "salu" and ("m0", 0) in prev.wr: return 1
    return 0


class Asm:
    def __init__(self):
        self.items = []
        self.vm_n = 0
        self.lg_n = 0

    def __call__(self, text):
        for ln in text.strip("\n").split("\n"):
            ln = ln.strip()
            if not ln or ln.startswith(";"):
                continue
            if ln.endswith(":"):
                self.items.append(("l", ln[:-1]))
                continue
            self.items.append(("i", ln))
            op = ln.split()[0]
            if op.startswith(("buffer_", "global_")): self.vm_n += 1
            if op.startswith("ds_"): self.lg_n += 1

    stamps = False
    def stamp(self, i):
        if self.stamps:
            self(f"{'s_memtime' if self.stamps == 'cyc' else 's_memrealtime'} s[{70+2*i}:{71+2*i}]")
            self("s_waitcnt lgkmcnt(0)")
    def stamp_flush(self, n, ws_srd, kid, wave_sgpr, vtmp, vdata, nwaves):
        if not self.stamps: return
        self(f"s_mul_i32 s68, s2, {nwaves}")
        self(f"s_add_u32 s68, s68, s{wave_sgpr}")
        self(f"s_lshl_b32 s68, s68, 6")
        self(f"s_add_u32 s68, s68, {20*1024*1024 + kid*262144}")
        self(f"s_mov_b64 exec, 1")
        self(f"v_mov_b32 v{vtmp}, 0")
        for i in range(n):
            self(f"v_mov_b32 v{vdata}, s{70+2*i}")
            self(f"buffer_store_dword v{vdata}, v{vtmp}, s[{ws_srd}:{ws_srd+3}], s68 offen offset:{4*i}")
        self("s_mov_b64 exec, -1")

    def label(self, name): self.items.append(("l", name))
    def raw(self, text): self.items.append(("r", text))

    def vm_mark(self): return self.vm_n
    def lg_mark(self): return self.lg_n
    def wait_vm(self, mark):
        n = self.vm_n - mark
        assert n >= 0
        if n <= 63: self(f"s_waitcnt vmcnt({n})")
    def wait_lg(self, mark):
        n = self.lg_n - mark
        assert n >= 0
        self(f"s_waitcnt lgkmcnt({min(n, 15)})" if n <= 15 else "s_nop 0")
        assert n <= 15, "too many LDS ops in flight for a counted wait"

    def render(self):
        out = []
        hist = []
        nnop = 0
        def pad(n):
            nonlocal nnop
            while n > 0:
                k = min(n, 16)
                out.append(f"    s_nop {k-1}")
                for h in hist: h[1] += k
                n -= k; nnop += k
        def flush():
            need = 0
            for p, d in hist: need = max(need, worst_case(p) - d)
            pad(need)
            hist.clear()
        for kind, text in self.items:
            if kind == "r":
                out.append(text); continue
            if kind == "l":
                flush(); out.append(text + ":"); continue
            ins = Ins(text)
            if ins.kind == "branch" and ins.op != "s_endpgm":
                need = 0
                for p, d in hist: need = max(need, required(p, ins) - d)
                pad(need)
                flush_needed = max([worst_case(p) - d - 1 for p, d in hist] + [0])
                pad(flush_needed)
                out.append("    " + text)
                hist.clear()
                continue
            need = 0
            for p, d in hist: need = max(need, required(p, ins) - d)
            pad(need)
            out.append("    " + text)
            for h in hist: h[1] += ins.nops
            hist[:] = [h for h in hist if h[1] < 20]
            hist.append([ins, 0])
        self.nnop = nnop
        return "\n".join(out) + "\n"


class Regs:
    def __init__(self, kind, first, last):
        self.kind, self.free_ = kind, [True] * (last + 1)
        for i in range(first): self.free_[i] = False
        self.hi = first - 1
    def alloc(self, n=1, align=1):
        if n >= 2 and align == 1 and self.kind in "vs": align = 2
        i = 0
        while True:
            i = -(-i // align) * align
            if i + n > len(self.free_): raise RuntimeError("out of registers " + self.kind)
            if all(self.free_[i:i + n]):
                for j in range(i, i + n): self.free_[j] = False
                self.hi = max(self.hi, i + n - 1)
                return i
            i += 1
    def free(self, base, n=1):
        for j in range(base, base + n):
            assert not self.free_[j]
            self.free_[j] = True


def v(b, n=1): return f"v{b}" if n == 1 else f"v[{b}:{b+n-1}]"
def s(b, n=1): return f"s{b}" if n == 1 else f"s[{b}:{b+n-1}]"


def kernel_desc(name, vgprs, sgprs=102):
    acc = -(-vgprs // 4) * 4
    return f""".p2align 6
.amdhsa_kernel {name}
  .amdhsa_next_free_vgpr {vgprs}
  .amdhsa_next_free_sgpr {sgprs}
  .amdhsa_accum_offset {acc}
  .amdhsa_group_segment_fixed_size 0
  .amdhsa_kernarg_size 80
  .amdhsa_user_sgpr_count 2
  .amdhsa_user_sgpr_kernarg_segment_ptr 1
  .amdhsa_system_sgpr_workgroup_id_x 1
  .amdhsa_float_denorm_mode_32 3
.end_amdhsa_kernel
"""


def kernel_head(name):
    return f".globl {name}\n.p2align 8\n.type {name},@function\n{name}:\n"
```

```python
from asmgen import *
from common import *

NWG = 256
LOG2E = 1.4426950408889634
M_OFFSET = 60.0
L_LO, L_HI = 2.0 ** -80, 2.0 ** 64

F_S1 = FLG
F_KV1 = FLG + 2048
F_KV2 = FLG + 4096
F_O = FLG + 6144
FLG_BYTES = 8192

WPH = 0
CNT = 2048
MX = CNT + 64
PH = 4352
RED = PH + 8 * 2304
WO = 73728
LDS_BYTES = 163840

S_WS, S_A, S_B, S_DBG = 8, 12, 16, 20
s_x, s_i, s_w, s_br, s_rb, s_ct = 24, 25, 26, 27, 28, 29
s_t, s_t2, s_t3 = 30, 31, 32
s_hi = 34
s_spin = 36
s_head, s_qb = 37, 38
P_AX, P_AW, P_APHI, P_AWO, P_BX, P_BW, P_BWO, P_OUT, P_DBG, P_WS = range(40, 60, 2)
WSR = f"s[{S_WS}:{S_WS+3}]"


def poll(a, label, srd, voff, vdat, vtarget, spin_max, sleep=2):
    a(f"s_mov_b32 s{s_spin}, 0")
    a.label(label)
    a(f"""
    buffer_load_dword v{vdat}, v{voff}, {srd}, 0 offen sc1
    s_add_u32 s{s_spin}, s{s_spin}, 1
    s_waitcnt vmcnt(0)
    v_cmp_ge_u32 vcc, v{vdat}, v{vtarget}
    s_cmp_eq_u64 vcc, exec
    s_cbranch_scc1 {label}_ok
    s_cmp_ge_u32 s{s_spin}, {spin_max}
    s_cbranch_scc1 {label}_ok
    s_sleep {sleep}
    s_branch {label}
    """)
    a.label(label + "_ok")


def arrive(a, srd, soff_sgpr, v0_, v1_):
    a(f"""
    v_mov_b32 v{v0_}, 0
    v_mov_b32 v{v1_}, 1
    s_mov_b64 exec, 1
    buffer_atomic_add v{v1_}, v{v0_}, {srd}, s{soff_sgpr} offen
    s_mov_b64 exec, -1
    """)
```

```python
from fcommon import *

XR = lambda c: 16384 * c
WR0 = 114688


def phase1(a, name, store_mod="sc1"):
    V = Regs("v", 1, 255)
    sX, sW = S_A, S_B
    s_rt, s_ch, s_xo, s_wo, s_mx, s_mw, s_sx, s_sw, s_stN, s_stT, s_scale, s_q, s_T = 60, 61, 62, 63, 64, 65, 66, 67, 37, 38, 4, 33, 39
    vX = [V.alloc() for _ in range(2)]
    vW = V.alloc()
    t0, t1, t2, t3 = [V.alloc() for _ in range(4)]
    a(f"""
    v_lshrrev_b32 v{t0}, 3, v0
    v_and_b32 v{t2}, 7, v0
    v_lshrrev_b32 v{t1}, 4, v0
    v_mul_u32_u24 v{vX[0]}, 896, v{t0}
    v_mul_u32_u24 v{vW}, 2688, v{t0}
    v_xor_b32 v{t3}, v{t1}, v{t2}
    v_lshl_add_u32 v{vX[0]}, v{t3}, 4, v{vX[0]}
    v_xor_b32 v{t3}, 4, v{t3}
    v_mul_u32_u24 v{vX[1]}, 896, v{t0}
    v_lshl_add_u32 v{vX[1]}, v{t3}, 4, v{vX[1]}
    v_add_u32 v{vX[1]}, {8*896}, v{vX[1]}
    v_and_b32 v{t1}, 1, v{t1}
    v_lshlrev_b32 v{t1}, 2, v{t1}
    v_xor_b32 v{t1}, v{t1}, v{t2}
    v_lshl_add_u32 v{vW}, v{t1}, 4, v{vW}
    s_and_b32 s{s_rt}, s{s_w}, 3
    s_lshr_b32 s{s_ch}, s{s_w}, 2
    s_lshl_b32 s{s_t}, s{s_rb}, 3
    s_add_u32 s{s_t}, s{s_t}, s{s_w}
    s_mul_i32 s{s_xo}, s{s_t}, {16*896}
    s_mul_i32 s{s_wo}, s{s_w}, {8*2688}
    s_mul_i32 s{s_t}, s{s_ct}, 384
    s_add_u32 s{s_wo}, s{s_wo}, s{s_t}
    s_lshl_b32 s{s_mx}, s{s_w}, 11
    s_lshl_b32 s{s_mw}, s{s_w}, 10
    s_waitcnt lgkmcnt(0)
    s_cmp_eq_u32 s{s_br}, 0
    s_cselect_b32 s4, s{P_AX}, s{P_BX}
    s_cselect_b32 s5, s{P_AX+1}, s{P_BX+1}
    s_cselect_b32 s6, s{P_AW}, s{P_BW}
    s_cselect_b32 s7, s{P_AW+1}, s{P_BW+1}
    """)
    srd(a, sX, 4, 5, X_BYTES)
    srd(a, sW, 6, 7, W_BYTES)
    srd(a, S_WS, P_WS, P_WS + 1, WS_SIZE, WS_BASE)
    srd(a, S_DBG, P_DBG, P_DBG + 1, 256)
    a(f"s_cmp_ge_u32 s{s_i}, 28\ns_cbranch_scc1 {name}_idle")

    def dma_x(c):
        for i in range(2):
            a(f"s_add_u32 m0, s{s_mx}, {XR(c) + 1024*i}")
            if i == 0: a(f"s_add_u32 s{s_sx}, s{s_xo}, {128*c}")
            else: a("s_nop 0")
            a(f"buffer_load_dwordx4 v{vX[i]}, s[{sX}:{sX+3}], s{s_sx} offen lds")
    def dma_w_ops(p, c):
        dst = WR0 + 8192 * (c % 6) if p == 0 else XR(c) + 8192 * (p - 1)
        return [f"s_add_u32 m0, s{s_mw}, {dst}", f"s_add_u32 s{s_sw}, s{s_wo}, {64*2688*c + 128*p}",
                f"buffer_load_dwordx4 v{vW}, s[{sW}:{sW+3}], s{s_sw} offen lds"]
    mk = {}
    for c in range(7):
        dma_x(c)
        if c < 6:
            for x in dma_w_ops(0, c): a(x)
        mk[(0, c)] = a.vm_mark()
    a.stamp(1)

    vP = V.alloc(4, 4); vA = V.alloc()
    a(f"""
    s_lshl_b32 s{s_q}, s{s_ct}, 3
    s_add_u32 s{s_q}, s{s_q}, s{s_w}
    s_mul_i32 s{s_stT}, s{s_br}, {BR_STRIDE}
    s_lshl_b32 s{s_t}, s{s_rb}, 13
    s_add_u32 s{s_stN}, s{s_stT}, s{s_t}
    v_mov_b32 v{vP}, {ONES2}
    v_mov_b32 v{vP+1}, 0x00003f80
    s_lshr_b32 s{s_t2}, s{s_q}, 1
    s_lshl_b32 s{s_t2}, s{s_t2}, 17
    s_cmp_lt_u32 s{s_q}, 32
    s_cselect_b32 s{s_t2}, s{s_t2}, 0x40000000
    s_and_b32 s{s_t}, s{s_q}, 1
    s_lshl_b32 s{s_t}, s{s_t}, 12
    s_add_u32 s{s_t}, s{s_t}, s{s_t2}
    s_add_u32 s{s_t}, s{s_t}, {KF + 1024 + 512 + 8}
    v_lshrrev_b32 v{t0}, 5, v0
    v_and_b32 v{t1}, 31, v0
    v_lshlrev_b32 v{t0}, 11, v{t0}
    v_lshlrev_b32 v{t1}, 4, v{t1}
    v_add3_u32 v{vA}, v{t0}, v{t1}, s{s_t}
    buffer_store_dwordx2 v[{vP}:{vP+1}], v{vA}, {WSR}, s{s_stN} offen {store_mod}
    s_sub_u32 s{s_t}, s{s_q}, 32
    s_cmp_lt_u32 s{s_t}, 4
    s_cselect_b32 s{s_t2}, 0, 0x40000000
    s_and_b32 s{s_t}, s{s_t}, 3
    s_lshl_b32 s{s_t}, s{s_t}, 6
    v_add_u32 v{t0}, s{s_t}, v0
    v_lshrrev_b32 v{t1}, 4, v{t0}
    v_lshlrev_b32 v{t1}, 17, v{t1}
    v_bfe_u32 v{t2}, v{t0}, 2, 2
    v_lshl_add_u32 v{t1}, v{t2}, 11, v{t1}
    v_bfe_u32 v{t3}, v{t0}, 1, 1
    v_lshl_add_u32 v{t1}, v{t3}, 10, v{t1}
    v_and_b32 v{t0}, 1, v{t0}
    v_lshl_add_u32 v{t1}, v{t0}, 9, v{t1}
    v_add_u32 v{t1}, s{s_t2}, v{t1}
    v_add_u32 v{vA}, {VF + 28*16}, v{t1}
    v_mov_b32 v{vP+1}, {ONES2}
    v_mov_b32 v{vP+2}, {ONES2}
    v_mov_b32 v{vP+3}, {ONES2}
    buffer_store_dwordx4 v[{vP}:{vP+3}], v{vA}, {WSR}, s{s_stN} offen {store_mod}
    s_lshl_b32 s{s_t}, s{s_rt}, 11
    s_add_u32 s{s_stT}, s{s_stN}, s{s_t}
    """)

    vXa = [V.alloc() for _ in range(4)]
    vWa = [V.alloc() for _ in range(3)]
    a(f"""
    s_lshl_b32 s{s_t}, s{s_rt}, 12
    v_and_b32 v{t0}, 31, v0
    v_lshlrev_b32 v{t0}, 7, v{t0}
    v_add_u32 v{t0}, s{s_t}, v{t0}
    v_lshrrev_b32 v{t1}, 5, v0
    v_bfe_u32 v{t2}, v0, 1, 3
    v_xor_b32 v{t1}, v{t1}, v{t2}
    v_lshl_add_u32 v{vXa[0]}, v{t1}, 4, v{t0}
    v_xor_b32 v{vXa[1]}, 32, v{vXa[0]}
    v_xor_b32 v{vXa[2]}, 64, v{vXa[0]}
    v_xor_b32 v{vXa[3]}, 96, v{vXa[0]}
    v_lshrrev_b32 v{t0}, 5, v0
    v_lshlrev_b32 v{t0}, 3, v{t0}
    v_bfe_u32 v{t1}, v0, 2, 2
    v_add_u32 v{t0}, v{t0}, v{t1}
    v_lshlrev_b32 v{t0}, 7, v{t0}
    v_bfe_u32 v{t1}, v0, 4, 1
    v_lshl_add_u32 v{t0}, v{t1}, 5, v{t0}
    v_and_b32 v{t2}, 3, v0
    v_lshl_add_u32 v{t0}, v{t2}, 3, v{t0}
    v_bfe_u32 v{t1}, v0, 3, 1
    v_xor_b32 v{t1}, s{s_ch}, v{t1}
    v_lshl_add_u32 v{vWa[0]}, v{t1}, 6, v{t0}
    v_add_u32 v{vWa[1]}, 0x10000, v{vWa[0]}
    v_add_u32 v{vWa[2]}, {WR0}, v{vWa[0]}
    """)

    vSt = [[V.alloc() for gg in range(4)] for p in range(3)]
    def store_addr_T(p):
        a(f"""
        s_mul_i32 s{s_t}, s{s_ct}, 6
        s_add_u32 s{s_t}, s{s_t}, s{s_ch}
        s_add_u32 s{s_t}, s{s_t}, {2*p}
        s_lshl_b32 s{s_t}, s{s_t}, 3
        v_lshrrev_b32 v{t3}, 5, v0
        v_add_u32 v{t3}, s{s_t}, v{t3}
        """)
        for gg in range(4):
            a(f"""
            v_add_u32 v{t0}, {2*gg}, v{t3}
            v_mul_u32_u24 v{t1}, 9363, v{t0}
            v_lshrrev_b32 v{t1}, 16, v{t1}
            v_mul_u32_u24 v{t2}, 7, v{t1}
            v_sub_u32 v{t0}, v{t0}, v{t2}
            v_lshlrev_b32 v{t1}, 17, v{t1}
            v_bfe_u32 v{t2}, v{t0}, 2, 1
            v_lshl_add_u32 v{t1}, v{t2}, 10, v{t1}
            v_and_b32 v{t2}, 1, v{t0}
            v_lshl_add_u32 v{t1}, v{t2}, 9, v{t1}
            v_bfe_u32 v{t2}, v{t0}, 1, 1
            v_lshl_add_u32 v{t1}, v{t2}, 3, v{t1}
            v_and_b32 v{t2}, 31, v0
            v_lshl_add_u32 v{vSt[p][gg]}, v{t2}, 4, v{t1}
            """)
    def store_addr_N(p):
        a(f"""
        s_mul_i32 s{s_t}, s{s_ct}, 6
        s_add_u32 s{s_t}, s{s_t}, s{s_ch}
        s_add_u32 s{s_t}, s{s_t}, {2*p}
        s_sub_u32 s{s_t}, s{s_t}, 28
        s_lshl_b32 s{s_t}, s{s_t}, 5
        v_and_b32 v{t0}, 31, v0
        v_add_u32 v{t0}, s{s_t}, v{t0}
        v_mul_u32_u24 v{t1}, 2341, v{t0}
        v_lshrrev_b32 v{t1}, 16, v{t1}
        v_mul_u32_u24 v{t2}, 28, v{t1}
        v_sub_u32 v{t0}, v{t0}, v{t2}
        v_lshlrev_b32 v{t1}, 17, v{t1}
        v_lshrrev_b32 v{t2}, 5, v0
        v_lshl_add_u32 v{t0}, v{t2}, 5, v{t0}
        v_lshl_add_u32 v{t0}, v{t0}, 4, v{t1}
        v_add_u32 v{vSt[p][0]}, {VF}, v{t0}
        """)

    xf = V.alloc(112, 4)
    acc = [V.alloc(16, 4) for _ in range(2)]
    fW = [V.alloc(4, 4) for _ in range(2)]
    vD = V.alloc(8, 4)
    vZ = V.alloc()

    def w_reads(p, c, t, buf):
        if p == 0: base, off = vWa[2], 8192 * (c % 6)
        else:
            off = XR(c) + 8192 * (p - 1)
            base = vWa[0]
            if off >= 49152 + 8192: base, off = vWa[1], off - 65536
            if off < 0: base, off = vWa[0], off + 65536
        assert 0 <= off and off + (16 * t + 4) * 128 < 65536, (p, c, t, off)
        return [f"ds_read_b64_tr_b16 v[{fW[buf]+2*u}:{fW[buf]+2*u+1}], v{base} offset:{off + (16*t+4*u)*128}" for u in range(2)]
    def x_read(c, t):
        r = xf + 16 * c + 4 * t
        return f"ds_read_b128 v[{r}:{r+3}], v{vXa[t]} offset:{XR(c) - (65536 if c >= 4 else 0)}"

    def epilogue_ops(p, form):
        A = acc[p & 1]
        ops = []
        if form == "T":
            for gg in range(4):
                r = A + 4 * gg; d = vD + 2 * gg
                ops.append(f"v_pk_mul_f32 v[{r}:{r+1}], v[{r}:{r+1}], s[{s_scale}:{s_scale+1}]")
                ops.append(f"v_pk_mul_f32 v[{r+2}:{r+3}], v[{r+2}:{r+3}], s[{s_scale}:{s_scale+1}]")
                ops.append(f"v_cvt_pk_bf16_f32 v{d}, v{r}, v{r+1}")
                ops.append(f"v_cvt_pk_bf16_f32 v{d+1}, v{r+2}, v{r+3}")
                ops.append(f"buffer_store_dwordx2 v[{d}:{d+1}], v{vSt[p][gg]}, {WSR}, s{s_stT} offen {store_mod}")
        else:
            for s_ in range(2):
                r = A + 8 * s_; d = vD + 4 * s_
                for i in range(4): ops.append(f"v_cvt_pk_bf16_f32 v{d+i}, v{r+2*i}, v{r+2*i+1}")
                ops.append(f"buffer_store_dwordx4 v[{d}:{d+3}], v{vSt[p][0]}, {WSR}, s{s_stT} offen offset:{1024*s_} {store_mod}")
        return ops
    def scale_setup(p):
        a(f"""
        s_mul_i32 s{s_t}, s{s_ct}, 6
        s_add_u32 s{s_t}, s{s_t}, {2*p}
        s_cmp_lt_u32 s{s_t}, 14
        s_cselect_b32 s{s_t}, s{s_br}, 0
        s_cmp_eq_u32 s{s_t}, 1
        s_cselect_b32 s{s_scale}, {hex(f32bits(QSCALE))}, 1.0
        s_mov_b32 s{s_scale+1}, s{s_scale}
        """)

    def variant(tag, forms):
        a.label(f"{name}_{tag}")
        vm0 = a.vm_n
        m = dict(mk)
        for p in range(3): (store_addr_T if forms[p] == "T" else store_addr_N)(p)
        a.stamp(2)
        a.wait_vm(m[(0, 0)]); a("s_barrier")
        a.stamp(3)
        a(x_read(0, 0))
        for r in w_reads(0, 0, 0, 0): a(r)
        buf = 0
        steps = [(p, c, t) for p in range(3) for c in range(7) for t in range(4)]
        pend = []
        epi = []
        for k, (p, c, t) in enumerate(steps):
            a("s_waitcnt lgkmcnt(0)")
            if p == 0 and t == 3:
                if c < 6:
                    a.wait_vm(m[(0, c + 1)] if c + 1 < 6 else max(m[(0, 6)], m["w06"]))
                else:
                    a.wait_vm(m[(1, 3)])
                a("s_barrier")
                if c == 0: pend += [("w06", dma_w_ops(0, 6))]
                pend += [((1, c), dma_w_ops(1, c)), ((2, c), dma_w_ops(2, c))]
                if c == 3:
                    for tt in range(4): a(f"v_add_u32 v{vXa[tt]}, 0x10000, v{vXa[tt]}")
                if c == 6:
                    a(f"v_mov_b32 v{vZ}, 0")
            if p == 1 and c == 3 and t == 3:
                a.wait_vm(m[(2, 6)]); a("s_barrier")
            nxt = []
            if k + 1 < len(steps):
                pn, cn, tn = steps[k + 1]
                if pn == 0: nxt.append(x_read(cn, tn))
                nxt += w_reads(pn, cn, tn, buf ^ 1)
            A = acc[p & 1]
            C = "0" if (c == 0 and t == 0) else f"v[{A}:{A+15}]"
            X = f"v[{xf+16*c+4*t}:{xf+16*c+4*t+3}]"; W = f"v[{fW[buf]}:{fW[buf]+3}]"
            A_, B_ = (W, X) if forms[p] == "T" else (X, W)
            for r in nxt: a(r)
            a(f"v_mfma_f32_32x32x16_bf16 v[{A}:{A+15}], {A_}, {B_}, {C}")
            while pend:
                key, ops = pend.pop(0)
                for x in ops: a(x)
                m[key] = a.vm_mark()
            if p == 0 and c == 6 and t == 3:
                a(f"buffer_load_dword v{vZ}, v{vZ}, s[{S_DBG}:{S_DBG+3}], 0 offen sc1")
            if c == 0 and t == 0 and p > 0:
                if forms[p - 1] == "T": scale_setup(p - 1)
                epi = epilogue_ops(p - 1, forms[p - 1])
            if epi and (c > 0 or t >= 2):
                for _ in range(5):
                    if epi: a(epi.pop(0))
            buf ^= 1
        a.stamp(4)
        if forms[2] == "T": scale_setup(2)
        for x in epilogue_ops(2, forms[2]): a(x)
        a.stamp(5)
        a(f"s_waitcnt vmcnt(0)\ns_branch {name}_p1_end")
        a.vm_n = vm0

    a(f"""
    s_cmp_eq_u32 s{s_ct}, 4
    s_cbranch_scc1 {name}_TTN
    s_cmp_gt_u32 s{s_ct}, 4
    s_cbranch_scc1 {name}_NNN
    """)
    variant("TTT", "TTT")
    variant("TTN", "TTN")
    variant("NNN", "NNN")
    a.label(f"{name}_p1_end")
    a(f"""
    s_barrier
    s_cmp_eq_u32 s{s_w}, 0
    s_cbranch_scc0 {name}_s1_wait
    """)
    a.label(f"{name}_zc")
    a(f"""
    v_readfirstlane_b32 s{s_t}, v{vZ}
    s_cmp_ge_u32 s{s_t}, 1
    s_cbranch_scc1 {name}_zc_ok
    """)
    a(f"v_mov_b32 v{t0}, 0\nv_mov_b32 v{t1}, 1")
    poll(a, f"{name}_zcp", f"s[{S_DBG}:{S_DBG+3}]", t0, t2, t1, 400000)
    a.label(f"{name}_zc_ok")
    a(f"""
    s_mul_i32 s{s_t}, s{s_br}, 7
    s_add_u32 s{s_t}, s{s_t}, s{s_ct}
    s_lshl_b32 s{s_t}, s{s_t}, 7
    s_add_u32 s{s_t}, s{s_t}, {F_S1}
    """)
    arrive(a, WSR, s_t, t0, t1)
    a(f"s_branch {name}_s1_wait")

    a.label(f"{name}_idle")
    a(f"""
    s_cmp_eq_u32 s2, 224
    s_cbranch_scc0 {name}_idle_zc
    s_lshl_b32 s{s_t}, s{s_w}, 10
    s_add_u32 s{s_t}, s{s_t}, {FLG}
    v_lshlrev_b32 v{t0}, 4, v0
    v_mov_b32 v{vP}, 0
    v_mov_b32 v{vP+1}, 0
    v_mov_b32 v{vP+2}, 0
    v_mov_b32 v{vP+3}, 0
    buffer_store_dwordx4 v[{vP}:{vP+3}], v{t0}, {WSR}, s{s_t} offen sc1
    s_waitcnt vmcnt(0)
    s_barrier
    s_cmp_eq_u32 s{s_w}, 0
    s_cbranch_scc0 {name}_s1_wait
    s_mov_b32 s{s_t}, 0
    """)
    arrive(a, f"s[{S_DBG}:{S_DBG+3}]", s_t, t0, t1)
    a.label(f"{name}_idle_zc")
    a(f"s_cmp_eq_u32 s{s_w}, 0\ns_cbranch_scc0 {name}_s1_wait")
    a(f"v_mov_b32 v{t0}, 0\nv_mov_b32 v{t1}, 1")
    poll(a, f"{name}_zci", f"s[{S_DBG}:{S_DBG+3}]", t0, t2, t1, 400000)
    a.label(f"{name}_s1_wait")
    return V.hi + 1
```

```python
from fcommon import *

KL2 = 10


def phase23(a, name, spin_max=400000, force_exact=False, prio=True, kl2=KL2, exp=""):
    V = Regs("v", 1, 255)
    sPH, sWO = S_A, S_B
    s_g, s_c = 60, 61
    s_k, s_v, s_q, s_of, s_att, s_kb = 62, 63, 64, 65, 66, 67
    s_log2e, s_a, s_fl, s_j = 33, 39, 4, 5
    s_m0, s_m1 = 6, 2
    s_wg = 3
    vL16 = V.alloc()
    vOF = [V.alloc() for _ in range(4)]
    t0, t1, t2, t3 = [V.alloc() for _ in range(4)]
    vT = V.alloc()
    vDum = V.alloc()
    Q = [V.alloc(8, 4) for _ in range(2)]
    KR = [V.alloc(8, 4) for _ in range(4)]
    VR = [V.alloc(8, 4) for _ in range(4)]
    O = [V.alloc(16, 4) for _ in range(2)]
    S = [V.alloc(16, 4) for _ in range(2)]
    P = V.alloc(8, 4)
    X = V.alloc(48, 4)

    a(f"""
    s_lshl_b32 s{s_t}, s{s_x}, 1
    s_and_b32 s{s_t2}, s{s_i}, 1
    s_add_u32 s{s_head}, s{s_t}, s{s_t2}
    s_lshr_b32 s{s_qb}, s{s_i}, 1
    s_mov_b32 s{sPH}, s{P_APHI}
    s_mov_b32 s{sPH+1}, s{P_APHI+1}
    s_add_u32 s{s_t}, s{s_head}, 1
    s_mul_i32 s{sPH+2}, s{s_t}, 1568
    s_mov_b32 s{sPH+3}, 0x00020000
    s_mul_i32 s{s_t}, s{s_head}, 1568
    s_lshl_b32 s{s_t2}, s{s_w}, 8
    v_lshl_add_u32 v{vT}, v0, 2, s{s_t2}
    buffer_load_dword v{t3}, v{vT}, s[{sPH}:{sPH+3}], s{s_t} offen
    s_cmp_eq_u32 s{s_br}, 0
    s_cselect_b32 s4, s{P_AWO}, s{P_BWO}
    s_cselect_b32 s5, s{P_AWO+1}, s{P_BWO+1}
    """)
    m_wphi = a.vm_mark()
    srd(a, sWO, 4, 5, WO_BYTES)
    a(f"""
    v_lshrrev_b32 v{t0}, 3, v0
    v_mul_u32_u24 v{t0}, 896, v{t0}
    v_bfe_u32 v{t1}, v0, 4, 1
    v_lshlrev_b32 v{t1}, 2, v{t1}
    v_and_b32 v{t2}, 7, v0
    v_xor_b32 v{t1}, v{t1}, v{t2}
    v_lshl_add_u32 v{t0}, v{t1}, 4, v{t0}
    s_mul_i32 s{s_t}, s{s_w}, {8*896}
    s_lshl_b32 s{s_t2}, s{s_ct}, 7
    s_add_u32 s{s_t}, s{s_t}, s{s_t2}
    s_cmp_lt_u32 s{s_i}, 28
    s_cselect_b32 s{s_t}, s{s_t}, 0x40000000
    s_lshl_b32 s{s_t2}, s{s_w}, 10
    """)
    for n in range(7):
        a(f"s_add_u32 m0, s{s_t2}, {WO + 8192*n}")
        a(f"s_add_u32 s{s_t3}, s{s_t}, {64*896*n}")
        a(f"buffer_load_dwordx4 v{t0}, s[{sWO}:{sWO+3}], s{s_t3} offen lds")
    a(f"""
    v_lshlrev_b32 v{vL16}, 4, v0
    s_mov_b32 s{s_hi}, 0
    s_mov_b32 s{s_hi+1}, -1
    s_mov_b32 s{s_att}, 0
    s_mov_b32 s{s_log2e}, {hex(f32bits(LOG2E))}
    s_and_b32 s{s_g}, s{s_w}, 1
    s_lshr_b32 s{s_c}, s{s_w}, 1
    s_lshl_b32 s{s_a}, s{s_head}, 17
    s_lshl_b32 s{s_t}, s{s_qb}, 2
    s_lshl_b32 s{s_t2}, s{s_g}, 1
    s_add_u32 s{s_t}, s{s_t}, s{s_t2}
    s_lshl_b32 s{s_t}, s{s_t}, 11
    s_add_u32 s{s_q}, s{s_t}, s{s_a}
    s_add_u32 s{s_q}, s{s_q}, {BR_STRIDE + QF}
    s_add_u32 s{s_t}, s{s_a}, {BR_STRIDE + KF}
    s_lshl_b32 s{s_t2}, s{s_c}, 15
    s_add_u32 s{s_kb}, s{s_t}, s{s_t2}
    s_mul_i32 s{s_t}, s{s_head}, 7
    """)
    for gg in range(4):
        a(f"""
        v_lshrrev_b32 v{t0}, 5, v0
        v_add_u32 v{t0}, {2*gg}, v{t0}
        v_add_u32 v{t0}, s{s_t}, v{t0}
        v_lshrrev_b32 v{t1}, 2, v{t0}
        v_lshlrev_b32 v{t1}, 10, v{t1}
        v_bfe_u32 v{t2}, v{t0}, 1, 1
        v_lshl_add_u32 v{t1}, v{t2}, 9, v{t1}
        v_and_b32 v{t0}, 1, v{t0}
        v_lshl_add_u32 v{t1}, v{t0}, 3, v{t1}
        v_and_b32 v{t0}, 31, v0
        v_lshl_add_u32 v{vOF[gg]}, v{t0}, 4, v{t1}
        """)
    a(f"""
    v_mov_b32 v{t0}, 0x40000000
    s_mov_b64 exec, s[{s_hi}:{s_hi+1}]
    v_mov_b32 v{vOF[3]}, v{t0}
    s_mov_b64 exec, -1
    """)
    a.wait_vm(m_wphi)
    a(f"""
    v_add_u32 v{t0}, {WPH}, v{vT}
    ds_write_b32 v{t0}, v{t3}
    v_mov_b32 v{t1}, 0
    v_mov_b32 v{t2}, {CNT}
    ds_write_b32 v{t2}, v{t1}
    ds_write_b32 v{t2}, v{t1} offset:4
    ds_write_b32 v{t2}, v{t1} offset:8
    s_cmp_eq_u32 s{s_w}, 0
    s_cbranch_scc0 {name}_s1_ok
    v_min_u32 v{t0}, 13, v0
    v_lshlrev_b32 v{t0}, 7, v{t0}
    v_add_u32 v{t0}, {F_S1}, v{t0}
    v_mov_b32 v{t1}, 16
    """)
    poll(a, f"{name}_s1p", WSR, t0, t2, t1, spin_max)
    a.label(f"{name}_s1_ok")
    a("s_waitcnt lgkmcnt(0)\ns_barrier")
    a.stamp(6)

    def load_q():
        for ab in range(2):
            for st in range(2):
                a(f"buffer_load_dwordx4 v[{Q[ab]+4*st}:{Q[ab]+4*st+3}], v{vL16}, {WSR}, s{s_q} offen offset:{2048*ab + 1024*st}")
    def kv_soff(j):
        a(f"s_add_u32 s{s_k}, s{s_kb}, {(j & ~1) * 2048}")
        a(f"s_add_u32 s{s_v}, s{s_kb}, {(j & ~1) * 2048 + (VF - KF)}")
    def load_k(j):
        return [f"buffer_load_dwordx4 v[{KR[j%4]+4*st}:{KR[j%4]+4*st+3}], v{vL16}, {WSR}, s{s_k} offen offset:{(j&1)*2048 + 1024*st}" for st in range(2)]
    def load_v(j):
        return [f"buffer_load_dwordx4 v[{VR[j%4]+4*st}:{VR[j%4]+4*st+3}], v{vL16}, {WSR}, s{s_v} offen offset:{(j&1)*2048 + 1024*st}" for st in range(2)]
    mk, mv = {}, {}
    def ring_prologue():
        for j in range(3):
            if j % 2 == 0: kv_soff(j)
            for x in load_k(j): a(x)
            mk[j] = a.vm_mark()
            for x in load_v(j): a(x)
            mv[j] = a.vm_mark()

    kf = X
    vfA = O[0]
    a(f"""
    s_cmp_lt_u32 s{s_w}, 4
    s_cbranch_scc0 {name}_pro_common
    s_lshl_b32 s{s_t2}, s{s_qb}, 2
    s_add_u32 s{s_t}, s{s_w}, s{s_t2}
    s_lshl_b32 s{s_t}, s{s_t}, 11
    s_add_u32 s{s_t}, s{s_t}, s{s_a}
    s_add_u32 s{s_t}, s{s_t}, {KF}
    buffer_load_dwordx4 v[{kf}:{kf+3}], v{vL16}, {WSR}, s{s_t} offen
    buffer_load_dwordx4 v[{kf+4}:{kf+7}], v{vL16}, {WSR}, s{s_t} offen offset:1024
    s_cmp_lt_u32 s{s_w}, 2
    s_cbranch_scc0 {name}_pro_common
    s_lshl_b32 s{s_t}, s{s_qb}, 13
    s_add_u32 s{s_t}, s{s_t}, s{s_a}
    s_add_u32 s{s_t}, s{s_t}, {VF}
    s_add_u32 s{s_t2}, s{s_t}, 4096
    """)
    for rt in range(4):
        for st in range(2):
            r = vfA + 8 * rt + 4 * st
            a(f"buffer_load_dwordx4 v[{r}:{r+3}], v{vL16}, {WSR}, s{s_t if rt < 2 else s_t2} offen offset:{(rt&1)*2048 + 1024*st}")
    a.label(f"{name}_pro_common")
    load_q()
    K0 = KR[3]
    a(f"""
    s_add_u32 s{s_t}, s{s_a}, {BR_STRIDE + KF}
    buffer_load_dwordx4 v[{K0}:{K0+3}], v{vL16}, {WSR}, s{s_t} offen
    buffer_load_dwordx4 v[{K0+4}:{K0+7}], v{vL16}, {WSR}, s{s_t} offen offset:1024
    """)
    m_k0 = a.vm_mark()
    ring_prologue()
    if "nopf" not in exp:
        a(f"""
        v_lshlrev_b32 v{t0}, 7, v0
        s_lshl_b32 s{s_t}, s{s_qb}, 13
        s_add_u32 s{s_t}, s{s_t}, s{s_a}
        s_mov_b32 s{s_t2}, 0x40000000
        s_cmp_eq_u32 s{s_w}, 5
        s_cselect_b32 s{s_t2}, {BR_STRIDE + KF}, s{s_t2}
        s_cmp_eq_u32 s{s_w}, 6
        s_cselect_b32 s{s_t2}, {BR_STRIDE + VF}, s{s_t2}
        s_cmp_eq_u32 s{s_w}, 7
        s_cselect_b32 s{s_t2}, {QF}, s{s_t2}
        s_add_u32 s{s_t}, s{s_t}, s{s_t2}
        buffer_load_dword v{vDum}, v{t0}, {WSR}, s{s_t} offen
        """)
    a(f"s_cmp_lt_u32 s{s_w}, 4\ns_cbranch_scc0 {name}_att_m")
    if "noA" in exp: a(f"s_branch {name}_att_m")

    def wphi_frags(dst):
        a(f"""
        v_lshrrev_b32 v{t0}, 5, v0
        v_lshlrev_b32 v{t0}, 2, v{t0}
        v_bfe_u32 v{t1}, v0, 2, 2
        v_add_u32 v{t0}, v{t0}, v{t1}
        v_mul_u32_u24 v{t0}, 56, v{t0}
        v_bfe_u32 v{t1}, v0, 4, 1
        v_lshl_add_u32 v{t0}, v{t1}, 5, v{t0}
        v_and_b32 v{t2}, 3, v0
        v_lshl_add_u32 v{t0}, v{t2}, 3, v{t0}
        """)
        for st in range(2):
            for u in range(2):
                a(f"ds_read_b64_tr_b16 v[{dst+4*st+2*u}:{dst+4*st+2*u+1}], v{t0} offset:{WPH + (16*st + 8*u)*56}")

    def xhalf(op, r, tmp_a, tmp_b):
        a(f"v_mov_b32 v{tmp_a}, v{r}")
        a(f"v_mov_b32 v{tmp_b}, v{r}")
        a(f"v_permlane32_swap_b32 v{tmp_a}, v{tmp_b}")
        a(f"{op} v{r}, v{tmp_a}, v{tmp_b}")

    def features(xf, wf, p, e, phi):
        a(f"v_mfma_f32_32x32x16_bf16 v[{p}:{p+15}], v[{wf}:{wf+3}], v[{xf}:{xf+3}], 0")
        a(f"v_mfma_f32_32x32x16_bf16 v[{p}:{p+15}], v[{wf+4}:{wf+7}], v[{xf+4}:{xf+7}], v[{p}:{p+15}]")
        a(f"s_mov_b64 exec, s[{s_hi}:{s_hi+1}]")
        for i in range(4): a(f"v_mov_b32 v{p+12+i}, v{p+8+i}")
        a("s_mov_b64 exec, -1")
        a(f"v_max3_f32 v{t0}, v{p}, v{p+1}, v{p+2}")
        a(f"v_min3_f32 v{t1}, v{p}, v{p+1}, v{p+2}")
        for i in range(3, 15, 2):
            a(f"v_max3_f32 v{t0}, v{t0}, v{p+i}, v{p+i+1}")
            a(f"v_min3_f32 v{t1}, v{t1}, v{p+i}, v{p+i+1}")
        a(f"v_max_f32 v{t0}, v{t0}, v{p+15}")
        a(f"v_min_f32 v{t1}, v{t1}, v{p+15}")
        xhalf("v_max_f32", t0, t2, t3)
        xhalf("v_min_f32", t1, t2, t3)
        m2 = e
        a(f"v_mul_f32 v{t0}, s{s_log2e}, v{t0}")
        a(f"v_mul_f32 v{t1}, s{s_log2e}, v{t1}")
        for sign in range(2):
            for i in range(16):
                if sign == 0: a(f"v_fma_f32 v{e+i}, v{p+i}, s{s_log2e}, -v{t0}")
                else:         a(f"v_fma_f32 v{e+i}, -v{p+i}, s{s_log2e}, v{t1}")
            for i in range(16): a(f"v_exp_f32 v{e+i}, v{e+i}")
            a(f"s_mov_b64 exec, s[{s_hi}:{s_hi+1}]")
            for i in range(4): a(f"v_mov_b32 v{e+12+i}, 0")
            a("s_mov_b64 exec, -1")
            sm = vT
            a(f"v_pk_add_f32 v[{phi+8*sign}:{phi+8*sign+1}], v[{e}:{e+1}], v[{e+2}:{e+3}]")
            for i in range(4, 16, 2):
                a(f"v_pk_add_f32 v[{phi+8*sign}:{phi+8*sign+1}], v[{phi+8*sign}:{phi+8*sign+1}], v[{e+i}:{e+i+1}]")
            a(f"v_add_f32 v{sm}, v{phi+8*sign}, v{phi+8*sign+1}")
            xhalf("v_add_f32", sm, t2, t3)
            a(f"v_rcp_f32 v{sm}, v{sm}")
            a(f"s_nop 0")
            a(f"v_mov_b32 v{t2}, v{sm}")
            a(f"v_mov_b32 v{t3}, v{sm}")
            assert t3 == t2 + 1 and t2 % 2 == 0
            for i in range(0, 16, 2): a(f"v_pk_mul_f32 v[{e+i}:{e+i+1}], v[{e+i}:{e+i+1}], v[{t2}:{t3}]")
            for i in range(8): a(f"v_cvt_pk_bf16_f32 v{phi+8*sign+i}, v{e+2*i}, v{e+2*i+1}")

    def spin(label, off_sgpr, target):
        a(f"v_mov_b32 v{t0}, s{off_sgpr}\nv_mov_b32 v{t1}, {target}")
        poll(a, label, WSR, t0, t2, t1, spin_max)

    def signal(off_sgpr):
        a("s_waitcnt vmcnt(0)")
        arrive(a, WSR, off_sgpr, t0, t1)

    wf = X + 8; phi = X + 16; pp = S[0]; ee = S[1]
    if prio: a("s_setprio 2")
    wphi_frags(wf)
    vm_save = a.vm_n
    a(f"s_waitcnt vmcnt({vm_save - m_k0 + 6}) lgkmcnt(0)")
    features(kf, wf, pp, ee, phi)
    a(f"""
    s_mul_i32 s{s_t}, s{s_w}, 2304
    v_and_b32 v{t0}, 31, v0
    v_mul_u32_u24 v{t0}, 72, v{t0}
    v_lshrrev_b32 v{t1}, 5, v0
    v_lshlrev_b32 v{t1}, 3, v{t1}
    v_add3_u32 v{t0}, v{t0}, v{t1}, s{s_t}
    """)
    for sign in range(2):
        for gg in range(4):
            r = phi + 8 * sign + 2 * gg
            a(f"ds_write_b64 v{t0}, v[{r}:{r+1}] offset:{PH + sign*4*2304 + 16*gg}")
    a(f"""
    s_waitcnt lgkmcnt(0)
    v_mov_b32 v{t1}, {CNT}
    v_mov_b32 v{t2}, 1
    s_mov_b64 exec, 1
    ds_add_u32 v{t1}, v{t2}
    s_mov_b64 exec, -1
    s_cmp_lt_u32 s{s_w}, 2
    s_cbranch_scc0 {name}_kv_done
    s_mov_b32 s{s_spin}, 0
    """)
    a.label(f"{name}_phi_wait")
    a(f"""
    ds_read_b32 v{t2}, v{t1}
    s_add_u32 s{s_spin}, s{s_spin}, 1
    s_waitcnt lgkmcnt(0)
    v_readfirstlane_b32 s{s_t}, v{t2}
    s_cmp_ge_u32 s{s_t}, 4
    s_cbranch_scc1 {name}_phi_ok
    s_cmp_ge_u32 s{s_spin}, {spin_max}
    s_cbranch_scc1 {name}_phi_ok
    s_branch {name}_phi_wait
    """)
    a.label(f"{name}_phi_ok")
    af = S[1]; acc = S[0]
    a(f"""
    s_mul_i32 s{s_t}, s{s_w}, {4*2304}
    v_lshrrev_b32 v{t0}, 5, v0
    v_lshlrev_b32 v{t0}, 2, v{t0}
    v_bfe_u32 v{t1}, v0, 2, 2
    v_add_u32 v{t0}, v{t0}, v{t1}
    v_mul_u32_u24 v{t0}, 72, v{t0}
    v_bfe_u32 v{t1}, v0, 4, 1
    v_lshl_add_u32 v{t0}, v{t1}, 5, v{t0}
    v_and_b32 v{t2}, 3, v0
    v_lshl_add_u32 v{t0}, v{t2}, 3, v{t0}
    v_add_u32 v{t0}, s{s_t}, v{t0}
    """)
    fr = X + 16
    for rt in range(4):
        for st in range(2):
            for u in range(2):
                b = fr + 8 * rt + 4 * st + 2 * u
                a(f"ds_read_b64_tr_b16 v[{b}:{b+1}], v{t0} offset:{PH + rt*2304 + (16*st + 8*u)*72}")
        if rt == 1: a("s_waitcnt lgkmcnt(0)")
    a("s_waitcnt vmcnt(0) lgkmcnt(0)")
    for rt in range(4):
        for st in range(2):
            C = "0" if (rt == 0 and st == 0) else f"v[{acc}:{acc+15}]"
            b = fr + 8 * rt + 4 * st
            a(f"v_mfma_f32_32x32x16_bf16 v[{acc}:{acc+15}], v[{b}:{b+3}], v[{vfA+8*rt+4*st}:{vfA+8*rt+4*st+3}], {C}")
    a(f"""
    s_lshl_b32 s{s_t}, s{s_head}, 4
    s_add_u32 s{s_t}, s{s_t}, s{s_qb}
    s_lshl_b32 s{s_t}, s{s_t}, 1
    s_add_u32 s{s_t}, s{s_t}, s{s_w}
    s_lshl_b32 s{s_t}, s{s_t}, 12
    s_add_u32 s{s_t}, s{s_t}, {KVP}
    """)
    for qd in range(4):
        a(f"buffer_store_dwordx4 v[{acc+4*qd}:{acc+4*qd+3}], v{vL16}, {WSR}, s{s_t} offen offset:{1024*qd} sc1")
    a(f"""
    s_waitcnt vmcnt(0)
    v_mov_b32 v{t1}, {CNT}
    v_mov_b32 v{t2}, 1
    s_mov_b64 exec, 1
    ds_add_rtn_u32 v{t3}, v{t1}, v{t2} offset:8
    s_waitcnt lgkmcnt(0)
    v_readfirstlane_b32 s{s_t}, v{t3}
    s_mov_b64 exec, -1
    s_cmp_eq_u32 s{s_t}, 1
    s_cbranch_scc0 {name}_kv_done
    s_lshl_b32 s{s_fl}, s{s_head}, 7
    s_add_u32 s{s_fl}, s{s_fl}, {F_KV1}
    """)
    arrive(a, WSR, s_fl, t0, t1)
    a.label(f"{name}_kv_done")
    a("s_waitcnt vmcnt(1) lgkmcnt(0)")
    a.vm_n = vm_save

    def level2():
        ld = X
        a(f"s_lshl_b32 s{s_fl}, s{s_head}, 7\ns_add_u32 s{s_fl}, s{s_fl}, {F_KV1}")
        spin(f"{name}_spin1", s_fl, 16)
        a(f"""
        s_lshr_b32 s{s_t2}, s{s_qb}, 2
        s_lshr_b32 s{s_t3}, s{s_t2}, 1
        s_and_b32 s{s_t2}, s{s_t2}, 1
        s_lshl_b32 s{s_t}, s{s_head}, 17
        s_lshl_b32 s{s_j}, s{s_t3}, 12
        s_add_u32 s{s_t}, s{s_t}, s{s_j}
        s_lshl_b32 s{s_j}, s{s_t2}, 11
        s_add_u32 s{s_t}, s{s_t}, s{s_j}
        s_add_u32 s{s_t}, s{s_t}, {KVP}
        s_and_b32 s{s_j}, s{s_qb}, 3
        s_lshl_b32 s{s_j}, s{s_j}, 8
        v_lshrrev_b32 v{t0}, 4, v0
        v_lshlrev_b32 v{t0}, 15, v{t0}
        v_and_b32 v{t1}, 15, v0
        v_lshl_add_u32 v{t0}, v{t1}, 4, v{t0}
        v_add_u32 v{t0}, s{s_j}, v{t0}
        """)
        for i in range(4):
            for qd in range(2):
                r = ld + 8 * i + 4 * qd
                a(f"buffer_load_dwordx4 v[{r}:{r+3}], v{t0}, {WSR}, s{s_t} offen offset:{1024*qd} sc1")
            if i < 3: a(f"s_add_u32 s{s_t}, s{s_t}, 8192")
        a("s_waitcnt vmcnt(0)")
        pk = lambda d, x, y: a(f"v_pk_add_f32 v[{d}:{d+1}], v[{x}:{x+1}], v[{y}:{y+1}]")
        for k in range(0, 8, 2):
            pk(ld + k, ld + k, ld + 8 + k); pk(ld + 16 + k, ld + 16 + k, ld + 24 + k)
        for k in range(0, 8, 2): pk(ld + k, ld + k, ld + 16 + k)
        for sw in ("v_permlane32_swap_b32", "v_permlane16_swap_b32"):
            for k in range(8): a(f"v_mov_b32 v{ld+8+k}, v{ld+k}")
            for k in range(8): a(f"{sw} v{ld+k}, v{ld+8+k}")
            for k in range(0, 8, 2): pk(ld + k, ld + k, ld + 8 + k)
        for k in range(4): a(f"v_cvt_pk_bf16_f32 v{ld+16+k}, v{ld+2*k}, v{ld+2*k+1}")
        a(f"""
        s_lshr_b32 s{s_t2}, s{s_qb}, 2
        s_lshl_b32 s{s_t}, s{s_head}, 2
        s_add_u32 s{s_t}, s{s_t}, s{s_t2}
        s_lshl_b32 s{s_t}, s{s_t}, 10
        s_add_u32 s{s_t}, s{s_t}, {KVF}
        s_and_b32 s{s_j}, s{s_qb}, 3
        s_lshl_b32 s{s_j}, s{s_j}, 8
        s_add_u32 s{s_t}, s{s_t}, s{s_j}
        s_mov_b64 exec, 0xffff
        buffer_store_dwordx4 v[{ld+16}:{ld+19}], v{vL16}, {WSR}, s{s_t} offen sc1
        s_mov_b64 exec, -1
        s_add_u32 s{s_fl}, s{s_fl}, {F_KV2 - F_KV1}
        """)
        signal(s_fl)

    def patch_q(ab, m):
        a(f"""
        v_xor_b32 v{t0}, 0x80000000, v{m}
        v_and_b32 v{t1}, 0xffff0000, v{t0}
        v_sub_f32 v{t0}, v{t0}, v{t1}
        v_and_b32 v{t2}, 0xffff0000, v{t0}
        v_sub_f32 v{t0}, v{t0}, v{t2}
        v_lshrrev_b32 v{t1}, 16, v{t1}
        v_or_b32 v{t1}, v{t1}, v{t2}
        v_lshrrev_b32 v{t0}, 16, v{t0}
        s_mov_b64 exec, s[{s_hi}:{s_hi+1}]
        v_mov_b32 v{Q[ab]+6}, v{t1}
        v_mov_b32 v{Q[ab]+7}, v{t0}
        s_mov_b64 exec, -1
        """)
    def zero_q_pads():
        a(f"s_mov_b64 exec, s[{s_hi}:{s_hi+1}]")
        for ab in range(2): a(f"v_mov_b32 v{Q[ab]+6}, 0\nv_mov_b32 v{Q[ab]+7}, 0")
        a("s_mov_b64 exec, -1")
    def qk(Sd, Kf, ab):
        return [f"v_mfma_f32_32x32x16_bf16 v[{Sd}:{Sd+15}], v[{Kf}:{Kf+3}], v[{Q[ab]}:{Q[ab]+3}], 0",
                f"v_mfma_f32_32x32x16_bf16 v[{Sd}:{Sd+15}], v[{Kf+4}:{Kf+7}], v[{Q[ab]+4}:{Q[ab]+7}], v[{Sd}:{Sd+15}]"]
    def max16(dst, r, init=None):
        if init is None:
            a(f"v_max3_f32 v{dst}, v{r}, v{r+1}, v{r+2}")
            for i in range(3, 15, 2): a(f"v_max3_f32 v{dst}, v{dst}, v{r+i}, v{r+i+1}")
            a(f"v_max_f32 v{dst}, v{dst}, v{r+15}")
        else:
            for i in range(0, 16, 2): a(f"v_max3_f32 v{dst}, v{dst}, v{r+i}, v{r+i+1}")

    a.label(f"{name}_att_m")
    a.stamp(7)
    a.wait_vm(m_k0)
    zero_q_pads()
    for ab in range(2):
        for x in qk(S[ab], K0, ab): a(x)
    mA, mB = P, P + 1
    max16(mA, S[0]); max16(mB, S[1])
    for ab, m in enumerate((mA, mB)):
        xhalf("v_max_f32", m, t2, t3)
        a(f"v_add_f32 v{m}, {hex(f32bits(M_OFFSET))}, v{m}")
        a(f"v_and_b32 v{m}, 0xffff0000, v{m}")
        a(f"v_xor_b32 v{t0}, 0x80000000, v{m}")
        a(f"v_lshrrev_b32 v{t0}, 16, v{t0}")
        a(f"s_mov_b64 exec, s[{s_hi}:{s_hi+1}]\nv_mov_b32 v{Q[ab]+6}, v{t0}\ns_mov_b64 exec, -1")
    if force_exact:
        a(f"s_mov_b64 exec, s[{s_hi}:{s_hi+1}]")
        for ab in range(2): a(f"v_mov_b32 v{Q[ab]+6}, 0x0000c380")
        a("s_mov_b64 exec, -1")

    a.label(f"{name}_att_go")
    a.stamp(8)
    a.wait_vm(mk[0])
    for x in qk(S[0], KR[0], 0): a(x)
    for t in range(32):
        j = t >> 1
        Sc, Sn = S[t & 1], S[(t + 1) & 1]
        if t == kl2 and "noA" not in exp:
            a(f"""
            s_lshl_b32 s{s_t}, s{s_att}, 3
            s_add_u32 s{s_t}, s{s_t}, s{s_w}
            s_cmp_eq_u32 s{s_t}, 6
            s_cbranch_scc0 {name}_l2_skip
            """)
            keep = a.vm_n
            if prio: a("s_setprio 3")
            level2()
            if prio: a("s_setprio 0")
            a.vm_n = keep
            a.label(f"{name}_l2_skip")
        for slot in range(4):
            r = Sc + 4 * slot
            a(f"v_exp_f32 v{r}, v{r}")
            a(f"v_exp_f32 v{r+1}, v{r+1}")
            if slot == 0 and t > 0:
                tp = t - 1
                a(f"v_mfma_f32_32x32x16_bf16 v[{O[tp&1]}:{O[tp&1]+15}], v[{VR[(tp>>1)%4]+4}:{VR[(tp>>1)%4]+7}], v[{P+4}:{P+7}], v[{O[tp&1]}:{O[tp&1]+15}]")
            if slot in (1, 2) and t < 31:
                jn = (t + 1) >> 1
                if slot == 1 and (t + 1) % 2 == 0 and jn in mk: a.wait_vm(mk[jn])
                a(qk(Sn, KR[jn % 4], (t + 1) & 1)[slot - 1])
            if slot == 3:
                if t % 2 == 0 and j in mv: a.wait_vm(mv[j])
                C = "0" if t < 2 else f"v[{O[t&1]}:{O[t&1]+15}]"
                a(f"v_mfma_f32_32x32x16_bf16 v[{O[t&1]}:{O[t&1]+15}], v[{VR[j%4]}:{VR[j%4]+3}], v[{P}:{P+3}], {C}")
            if t % 2 == 0 and j + 3 <= 15 and "noload" not in exp:
                jj = j + 3
                if slot == 1:
                    if jj % 2 == 0: kv_soff(jj)
                    for x in load_k(jj): a(x)
                    mk[jj] = a.vm_mark()
                if slot == 2:
                    for x in load_v(jj): a(x)
                    mv[jj] = a.vm_mark()
            a(f"v_exp_f32 v{r+2}, v{r+2}")
            a(f"v_exp_f32 v{r+3}, v{r+3}")
            a(f"v_cvt_pk_bf16_f32 v{P+2*slot}, v{r}, v{r+1}")
            a(f"v_cvt_pk_bf16_f32 v{P+2*slot+1}, v{r+2}, v{r+3}")
    a(f"s_nop 0\nv_mfma_f32_32x32x16_bf16 v[{O[1]}:{O[1]+15}], v[{VR[15%4]+4}:{VR[15%4]+7}], v[{P+4}:{P+7}], v[{O[1]}:{O[1]+15}]")
    a.stamp(9)

    vR = X
    a(f"""
    s_mul_i32 s{s_t}, s{s_g}, {6*4096}
    v_add_u32 v{vR}, s{s_t}, v{vL16}
    s_cmp_lt_u32 s{s_w}, 4
    s_cbranch_scc0 {name}_fin_late
    s_lshl_b32 s{s_t}, s{s_c}, 12
    v_add_u32 v{vR}, s{s_t}, v{vR}
    """)
    for ab in range(2):
        for qd in range(4):
            a(f"ds_write_b128 v{vR}, v[{O[ab]+4*qd}:{O[ab]+4*qd+3}] offset:{RED + ab*3*4096 + 1024*qd}")
    a(f"""
    s_cmp_eq_u32 s{s_att}, {1 if "noA" in exp else 0}
    s_cbranch_scc0 {name}_aend_done
    s_lshl_b32 s{s_t}, s{s_qb}, 2
    s_add_u32 s{s_j}, s{s_t}, s{s_w}
    s_lshl_b32 s{s_t}, s{s_j}, 11
    s_add_u32 s{s_t}, s{s_t}, s{s_a}
    s_add_u32 s{s_t}, s{s_t}, {QF}
    buffer_load_dwordx4 v[{kf+8}:{kf+11}], v{vL16}, {WSR}, s{s_t} offen
    buffer_load_dwordx4 v[{kf+12}:{kf+15}], v{vL16}, {WSR}, s{s_t} offen offset:1024
    """)
    qf = kf + 8; wf2 = kf + 16; phi2 = kf + 24
    kvf = O[0]
    wphi_frags(wf2)
    a("s_waitcnt vmcnt(0) lgkmcnt(0)")
    a(f"s_mov_b64 exec, s[{s_hi}:{s_hi+1}]\nv_mov_b32 v{qf+6}, 0\nv_mov_b32 v{qf+7}, 0\ns_mov_b64 exec, -1")
    features(qf, wf2, S[0], S[1], phi2)
    a(f"s_lshl_b32 s{s_fl}, s{s_head}, 7\ns_add_u32 s{s_fl}, s{s_fl}, {F_KV2}")
    spin(f"{name}_spin2", s_fl, 16)
    a(f"s_lshl_b32 s{s_t}, s{s_head}, 12\ns_add_u32 s{s_t}, s{s_t}, {KVF}")
    for f in range(4):
        a(f"buffer_load_dwordx4 v[{kvf+4*f}:{kvf+4*f+3}], v{vL16}, {WSR}, s{s_t} offen offset:{1024*f} sc1")
    accA = S[0]
    for f in range(4):
        a(f"s_waitcnt vmcnt({3-f})")
        C = "0" if f == 0 else f"v[{accA}:{accA+15}]"
        a(f"v_mfma_f32_32x32x16_bf16 v[{accA}:{accA+15}], v[{kvf+4*f}:{kvf+4*f+3}], v[{phi2+4*f}:{phi2+4*f+3}], {C}")

    def finish_tile(acc, eps, soff, check):
        a(f"v_mov_b32 v{t0}, v{acc+12}")
        a(f"v_mov_b32 v{t1}, v{acc+12}")
        a(f"v_permlane32_swap_b32 v{t0}, v{t1}")
        if eps: a(f"v_add_f32 v{t1}, {hex(f32bits(eps))}, v{t1}")
        a(f"v_rcp_f32 v{t2}, v{t1}")
        if check:
            a(f"v_cmp_le_f32 s[{s_m0}:{s_m0+1}], {hex(f32bits(L_LO))}, v{t1}".replace(f"s[{s_m0}:{s_m0+1}]", "vcc"))
            a(f"s_mov_b64 s[{s_m0}:{s_m0+1}], vcc")
            a(f"v_cmp_ge_f32 vcc, {hex(f32bits(L_HI))}, v{t1}")
            a(f"s_and_b64 s[{s_m0}:{s_m0+1}], s[{s_m0}:{s_m0+1}], vcc")
        a(f"v_mov_b32 v{t3}, v{t2}")
        for i in range(0, 16, 2): a(f"v_pk_mul_f32 v[{acc+i}:{acc+i+1}], v[{acc+i}:{acc+i+1}], v[{t2}:{t3}]")
        for gg in range(4):
            d = P + 2 * gg
            a(f"v_cvt_pk_bf16_f32 v{d}, v{acc+4*gg}, v{acc+4*gg+1}")
            a(f"v_cvt_pk_bf16_f32 v{d+1}, v{acc+4*gg+2}, v{acc+4*gg+3}")
            a(f"buffer_store_dwordx2 v[{d}:{d+1}], v{vOF[gg]}, {WSR}, s{soff} offen sc1")

    a(f"s_mul_i32 s{s_of}, s{s_j}, 28672\ns_add_u32 s{s_of}, s{s_of}, {OF}")
    finish_tile(accA, 1e-6, s_of, False)
    a.label(f"{name}_aend_done")
    a(f"s_waitcnt lgkmcnt(0)\ns_barrier\ns_branch {name}_fin_join")

    a.label(f"{name}_fin_late")
    def late(own):
        oth = 1 - own
        for qd in range(4):
            a(f"ds_write_b128 v{vR}, v[{O[oth]+4*qd}:{O[oth]+4*qd+3}] offset:{RED + oth*3*4096 + 2*4096 + 1024*qd}")
        a(f"""
        s_lshl_b32 s{s_t}, s{s_qb}, 2
        s_lshl_b32 s{s_t2}, s{s_g}, 1
        s_add_u32 s{s_t}, s{s_t}, s{s_t2}
        s_add_u32 s{s_t}, s{s_t}, {own}
        s_mul_i32 s{s_of}, s{s_t}, 28672
        s_add_u32 s{s_of}, s{s_of}, {OF + 2*MB}
        s_waitcnt lgkmcnt(0)
        s_barrier
        """)
        bufs = [S[0], S[1], O[oth]]
        for src in range(3):
            for qd in range(4):
                a(f"ds_read_b128 v[{bufs[src]+4*qd}:{bufs[src]+4*qd+3}], v{vR} offset:{RED + own*3*4096 + src*4096 + 1024*qd}")
        for src in range(3):
            a(f"s_waitcnt lgkmcnt({8 - 4*src})")
            for i in range(0, 16, 2):
                a(f"v_pk_add_f32 v[{O[own]+i}:{O[own]+i+1}], v[{O[own]+i}:{O[own]+i+1}], v[{bufs[src]+i}:{bufs[src]+i+1}]")
        finish_tile(O[own], 0.0, s_of, True)
        a(f"""
        s_cmp_eq_u64 s[{s_m0}:{s_m0+1}], exec
        s_cbranch_scc1 {name}_fin_join
        v_mov_b32 v{t0}, {CNT}
        v_mov_b32 v{t1}, 1
        ds_write_b32 v{t0}, v{t1} offset:4
        s_branch {name}_fin_join
        """)
    a(f"s_cmp_eq_u32 s{s_c}, 2\ns_cbranch_scc0 {name}_fin_late_b")
    late(0)
    a.label(f"{name}_fin_late_b")
    late(1)

    a.label(f"{name}_fin_join")
    a.stamp(10)
    a(f"""
    s_waitcnt vmcnt(0) lgkmcnt(0)
    s_barrier
    v_mov_b32 v{t0}, {CNT}
    ds_read_b32 v{t1}, v{t0} offset:4
    s_waitcnt lgkmcnt(0)
    v_readfirstlane_b32 s{s_t}, v{t1}
    s_cmp_eq_u32 s{s_t}, 0
    s_cbranch_scc1 {name}_p2_done
    s_cmp_eq_u32 s{s_att}, 0
    s_cbranch_scc0 {name}_p2_done
    """)
    a(f"s_mov_b32 s{s_att}, 1")
    zero_q_pads()
    a(f"v_mov_b32 v{mA}, 0xff800000\nv_mov_b32 v{mB}, 0xff800000\ns_mov_b32 s{s_j}, 0")
    a.label(f"{name}_ex_loop")
    a(f"""
    s_lshl_b32 s{s_t}, s{s_j}, 11
    s_add_u32 s{s_t}, s{s_t}, s{s_kb}
    buffer_load_dwordx4 v[{K0}:{K0+3}], v{vL16}, {WSR}, s{s_t} offen
    buffer_load_dwordx4 v[{K0+4}:{K0+7}], v{vL16}, {WSR}, s{s_t} offen offset:1024
    s_waitcnt vmcnt(0)
    """)
    for ab in range(2):
        for x in qk(S[ab], K0, ab): a(x)
    max16(mA, S[0], init=True); max16(mB, S[1], init=True)
    a(f"s_add_u32 s{s_j}, s{s_j}, 1\ns_cmp_lt_u32 s{s_j}, 16\ns_cbranch_scc1 {name}_ex_loop")
    for m in (mA, mB): xhalf("v_max_f32", m, t2, t3)
    a(f"""
    s_lshl_b32 s{s_t}, s{s_g}, 10
    s_lshl_b32 s{s_t2}, s{s_c}, 7
    v_and_b32 v{t0}, 31, v0
    v_lshlrev_b32 v{t0}, 2, v{t0}
    v_add_u32 v{t0}, s{s_t}, v{t0}
    v_add_u32 v{t1}, s{s_t2}, v{t0}
    ds_write_b32 v{t1}, v{mA} offset:{MX}
    ds_write_b32 v{t1}, v{mB} offset:{MX + 512}
    s_waitcnt lgkmcnt(0)
    s_barrier
    """)
    for ab in range(2):
        for cc in range(4):
            a(f"ds_read_b32 v{S[0]+4*ab+cc}, v{t0} offset:{MX + 512*ab + 128*cc}")
    a("s_waitcnt lgkmcnt(0)")
    for ab, m in enumerate((mA, mB)):
        b = S[0] + 4 * ab
        a(f"v_max3_f32 v{m}, v{b}, v{b+1}, v{b+2}")
        a(f"v_max_f32 v{m}, v{m}, v{b+3}")
    for ab, m in enumerate((mA, mB)): patch_q(ab, m)
    a(f"""
    v_mov_b32 v{t0}, {CNT}
    v_mov_b32 v{t1}, 0
    ds_write_b32 v{t0}, v{t1} offset:4
    s_waitcnt lgkmcnt(0)
    s_barrier
    """)
    ring_prologue()
    a(f"s_waitcnt vmcnt(0)\ns_branch {name}_att_go")

    a.label(f"{name}_p2_done")
    a.stamp(11)
    a(f"s_cmp_lt_u32 s{s_w}, 4\ns_cbranch_scc0 {name}_exit")
    a(f"s_cmp_eq_u32 s{s_w}, 0\ns_cbranch_scc0 {name}_p3_go")
    a(f"s_lshl_b32 s{s_t}, s{s_qb}, 7\ns_add_u32 s{s_t}, s{s_t}, {F_O}")
    arrive(a, WSR, s_t, t0, t1)
    a.label(f"{name}_p3_go")
    a(f"s_cmp_lt_u32 s{s_i}, 28\ns_cbranch_scc0 {name}_exit")
    if prio: a("s_setprio 0")
    V3 = Regs("v", 1, 255)
    u0, u1, u2, vl16, vO = [V3.alloc() for _ in range(5)]
    vW = [V3.alloc() for _ in range(2)]
    of = V3.alloc(112, 4)
    acc3 = [V3.alloc(16, 4) for _ in range(2)]
    fW = [[V3.alloc(4, 4) for _ in range(2)] for _ in range(2)]
    Pk = V3.alloc(8, 4)
    sOUT = S_A
    s_o, s_so = 62, 63
    srd(a, sOUT, P_OUT, P_OUT + 1, OUT_BYTES)
    a(f"""
    v_lshlrev_b32 v{vl16}, 4, v0
    s_lshl_b32 s{s_t}, s{s_rb}, 2
    s_add_u32 s{s_t}, s{s_t}, s{s_w}
    s_mul_i32 s{s_o}, s{s_t}, 28672
    s_mul_i32 s{s_t2}, s{s_br}, {2*MB}
    s_add_u32 s{s_o}, s{s_o}, s{s_t2}
    s_add_u32 s{s_o}, s{s_o}, {OF}
    s_mul_i32 s{s_t}, s{s_t}, {32*1792}
    s_mul_i32 s{s_t2}, s{s_br}, 896
    s_add_u32 s{s_t}, s{s_t}, s{s_t2}
    s_lshl_b32 s{s_t2}, s{s_ct}, 7
    s_add_u32 s{s_so}, s{s_t}, s{s_t2}
    v_and_b32 v{u0}, 31, v0
    v_mul_u32_u24 v{u0}, 1792, v{u0}
    v_lshrrev_b32 v{u1}, 5, v0
    v_lshl_add_u32 v{vO}, v{u1}, 4, v{u0}
    v_lshrrev_b32 v{u0}, 5, v0
    v_lshlrev_b32 v{u0}, 3, v{u0}
    v_bfe_u32 v{u1}, v0, 2, 2
    v_add_u32 v{u0}, v{u0}, v{u1}
    v_lshlrev_b32 v{u0}, 7, v{u0}
    v_bfe_u32 v{u1}, v0, 4, 1
    v_lshl_add_u32 v{u0}, v{u1}, 5, v{u0}
    v_and_b32 v{u2}, 3, v0
    v_lshl_add_u32 v{u0}, v{u2}, 3, v{u0}
    v_add_u32 v{u0}, {WO}, v{u0}
    v_bfe_u32 v{u1}, v0, 3, 1
    v_lshl_add_u32 v{vW[0]}, v{u1}, 6, v{u0}
    v_xor_b32 v{u1}, 1, v{u1}
    v_lshl_add_u32 v{vW[1]}, v{u1}, 6, v{u0}
    s_cmp_eq_u32 s{s_w}, 0
    s_cbranch_scc0 {name}_s2_ok
    s_lshl_b32 s{s_t}, s{s_rb}, 7
    s_add_u32 s{s_t}, s{s_t}, {F_O}
    v_mov_b32 v{u0}, s{s_t}
    v_mov_b32 v{u1}, 16
    """)
    poll(a, f"{name}_s2p", WSR, u0, u2, u1, spin_max, sleep=1)
    a.label(f"{name}_s2_ok")
    a("s_barrier")
    a.stamp(12)
    marks = []
    for st in range(7):
        a(f"s_add_u32 s{s_t}, s{s_o}, {4096*st}")
        for k in range(4):
            t = 4 * st + k
            a(f"buffer_load_dwordx4 v[{of+4*t}:{of+4*t+3}], v{vl16}, {WSR}, s{s_t} offen offset:{1024*k}")
            marks.append(a.vm_mark())
    def reads(t, buf):
        return [f"ds_read_b64_tr_b16 v[{fW[buf][jj]+2*u}:{fW[buf][jj]+2*u+1}], v{vW[jj]} offset:{(16*t+4*u)*128}" for jj in range(2) for u in range(2)]
    for r in reads(0, 0): a(r)
    buf = 0
    for t in range(28):
        a("s_waitcnt lgkmcnt(0)")
        nxt = reads(t + 1, buf ^ 1) if t < 27 else []
        for r in nxt: a(r)
        a.wait_vm(marks[t])
        for jj in range(2):
            C = "0" if t == 0 else f"v[{acc3[jj]}:{acc3[jj]+15}]"
            a(f"v_mfma_f32_32x32x16_bf16 v[{acc3[jj]}:{acc3[jj]+15}], v[{fW[buf][jj]}:{fW[buf][jj]+3}], v[{of+4*t}:{of+4*t+3}], {C}")
        buf ^= 1
    a.stamp(13)
    for jj in range(2):
        for gg in range(4):
            a(f"v_cvt_pk_bf16_f32 v{Pk+2*gg}, v{acc3[jj]+4*gg}, v{acc3[jj]+4*gg+1}")
            a(f"v_cvt_pk_bf16_f32 v{Pk+2*gg+1}, v{acc3[jj]+4*gg+2}, v{acc3[jj]+4*gg+3}")
        for k in (0, 2):
            a(f"v_permlane32_swap_b32 v{Pk+2*k}, v{Pk+2*k+2}")
            a(f"v_permlane32_swap_b32 v{Pk+2*k+1}, v{Pk+2*k+3}")
        for k in (0, 2):
            a(f"buffer_store_dwordx4 v[{Pk+2*k}:{Pk+2*k+3}], v{vO}, s[{sOUT}:{sOUT+3}], s{s_so} offen offset:{64*jj + 16*k}")
    a.stamp(14)
    return max(V.hi, V3.hi) + 1
```

```python
import sys
from fcommon import *
from p1 import phase1
from p2 import phase23

NAME = "concat_heads__linear_kernel_hedgehog__mha_block__prompt_kernel"


def gen_fused(name=NAME, stamps=False, p1={}, p2={}):
    a = Asm(); a.stamps = stamps
    a(f"s_cmp_ge_u32 s2, {NWG}\ns_cbranch_scc1 {name}_end")
    a.stamp(0)
    a(f"""
    s_load_dwordx16 s[40:55], s[0:1], 0
    s_load_dwordx4 s[56:59], s[0:1], 64
    v_lshrrev_b32 v1, 6, v0
    s_and_b32 s{s_x}, s2, 7
    s_lshr_b32 s{s_i}, s2, 3
    v_readfirstlane_b32 s{s_w}, v1
    v_and_b32 v0, 63, v0
    s_lshr_b32 s{s_br}, s{s_x}, 2
    s_and_b32 s{s_t}, s{s_x}, 3
    s_lshl_b32 s{s_t}, s{s_t}, 2
    s_and_b32 s{s_rb}, s{s_i}, 3
    s_add_u32 s{s_rb}, s{s_rb}, s{s_t}
    s_lshr_b32 s{s_ct}, s{s_i}, 2
    s_mov_b32 s69, s2
    """)
    n1 = phase1(a, name, **p1)
    n2 = phase23(a, name, **p2)
    a.label(f"{name}_exit")
    if stamps:
        a("s_waitcnt vmcnt(0)")
        a.stamp(15)
        a("s_mov_b32 s2, s69")
        a.stamp_flush(16, S_WS, 0, s_w, 1, 2, 8)
    a.label(f"{name}_end")
    a("s_endpgm")
    nv = max(n1, n2)
    text = kernel_head(name) + a.render()
    return text, kernel_desc(name, nv), dict(grid=NWG, block=512, lds=LDS_BYTES, vgprs=nv, nops=a.nnop)


def build(**kw):
    t, d, info = gen_fused(**kw)
    head = f"""; concat_heads(linear_kernel_hedgehog, mha_block) for gfx950, produced by a hand-written generator
; @launch grid=({info['grid']},1,1) block=({info['block']},1,1) lds={info['lds']}
"""
    return head + '.amdgcn_target "amdgcn-amd-amdhsa--gfx950"\n.text\n' + t + '.section .rodata,"a"\n' + d, info


if __name__ == "__main__":
    out = sys.argv[1] if len(sys.argv) > 1 else "fused.s"
    kw = eval(sys.argv[2]) if len(sys.argv) > 2 else {}
    txt, info = build(**kw)
    open(out, "w").write(txt)
    print(info, len(txt.splitlines()), "lines")
```

```python
from asmgen import *
from common import *

NWG = 256
LOG2E = 1.4426950408889634
M_OFFSET = 60.0
L_LO, L_HI = 2.0 ** -80, 2.0 ** 64

F_S1 = FLG
F_KV1 = FLG + 2048
F_KV2 = FLG + 4096
F_O = FLG + 6144
FLG_BYTES = 8192

PH = 0
RED = 22784
WO = 81920
WPH = 147456
CNT = WPH + 2048
MX = CNT + 64
LDS_BYTES = 163840
OFP = OF

S_WS, S_A, S_B, S_DBG = 8, 12, 16, 20
s_x, s_i, s_w, s_br, s_rb, s_ct = 24, 25, 26, 27, 28, 29
s_t, s_t2, s_t3 = 30, 31, 32
s_hi = 34
s_spin = 36
s_head, s_qb = 37, 38
P_AX, P_AW, P_APHI, P_AWO, P_BX, P_BW, P_BWO, P_OUT, P_DBG, P_WS = range(40, 60, 2)
WSR = f"s[{S_WS}:{S_WS+3}]"


def poll(a, label, srd, voff, vdat, vtarget, spin_max, sleep=2):
    a(f"s_mov_b32 s{s_spin}, 0")
    a.label(label)
    a(f"""
    buffer_load_dword v{vdat}, v{voff}, {srd}, 0 offen sc1
    s_add_u32 s{s_spin}, s{s_spin}, 1
    s_waitcnt vmcnt(0)
    v_cmp_ge_u32 vcc, v{vdat}, v{vtarget}
    s_cmp_eq_u64 vcc, exec
    s_cbranch_scc1 {label}_ok
    s_cmp_ge_u32 s{s_spin}, {spin_max}
    s_cbranch_scc1 {label}_ok
    s_sleep {sleep}
    s_branch {label}
    """)
    a.label(label + "_ok")


def arrive(a, srd, soff_sgpr, v0_, v1_):
    a(f"""
    v_mov_b32 v{v0_}, 0
    v_mov_b32 v{v1_}, 1
    s_mov_b64 exec, 1
    buffer_atomic_add v{v1_}, v{v0_}, {srd}, s{soff_sgpr} offen
    s_mov_b64 exec, -1
    """)
```

```python
from fcommon import *

XST = lambda st: 16384 * st
WST = lambda st: 49152 + 32768 * st


def phase1(a, name, store_mod="sc1", exp=""):
    V = Regs("v", 1, 255)
    sX, sW = S_A, S_B
    s_lw, s_xo, s_wo, s_mx, s_mw, s_sx, s_sw, s_off, s_nl = 60, 61, 62, 63, 64, 65, 66, 67, 33
    s_j = s_ct
    t0, t1, t2, t3 = [V.alloc() for _ in range(4)]
    vX = [V.alloc() for _ in range(2)]
    vW = V.alloc()
    a(f"""
    s_mul_i32 s{s_off}, s{s_j}, 336
    s_and_b32 s{s_t3}, s{s_off}, 0xffffff80
    s_and_b32 s{s_off}, s{s_off}, 127
    s_add_u32 s{s_nl}, s{s_off}, {336 + 127}
    s_lshr_b32 s{s_nl}, s{s_nl}, 7
    s_cmp_lt_u32 s{s_w}, 4
    s_cbranch_scc1 {name}_p1c
    """)
    a(f"""
    s_sub_u32 s{s_lw}, s{s_w}, 4
    v_lshrrev_b32 v{t0}, 3, v0
    v_and_b32 v{t2}, 7, v0
    v_lshrrev_b32 v{t1}, 4, v0
    v_mul_u32_u24 v{vX[0]}, 896, v{t0}
    v_mul_u32_u24 v{vW}, 2688, v{t0}
    v_xor_b32 v{t3}, v{t1}, v{t2}
    v_lshl_add_u32 v{vX[0]}, v{t3}, 4, v{vX[0]}
    v_xor_b32 v{t3}, 4, v{t3}
    v_mul_u32_u24 v{vX[1]}, 896, v{t0}
    v_lshl_add_u32 v{vX[1]}, v{t3}, 4, v{vX[1]}
    v_and_b32 v{t1}, 1, v{t1}
    v_lshlrev_b32 v{t1}, 2, v{t1}
    v_xor_b32 v{t1}, v{t1}, v{t2}
    v_lshl_add_u32 v{vW}, v{t1}, 4, v{vW}
    s_lshl_b32 s{s_t}, s{s_rb}, 2
    s_add_u32 s{s_t}, s{s_t}, s{s_lw}
    s_mul_i32 s{s_xo}, s{s_t}, {32*896}
    s_mul_i32 s{s_wo}, s{s_lw}, {16*2688}
    s_add_u32 s{s_wo}, s{s_wo}, s{s_t3}
    s_lshl_b32 s{s_mx}, s{s_lw}, 12
    s_lshl_b32 s{s_mw}, s{s_lw}, 11
    s_waitcnt lgkmcnt(0)
    s_cmp_eq_u32 s{s_br}, 0
    s_cselect_b32 s4, s{P_AX}, s{P_BX}
    s_cselect_b32 s5, s{P_AX+1}, s{P_BX+1}
    s_cselect_b32 s6, s{P_AW}, s{P_BW}
    s_cselect_b32 s7, s{P_AW+1}, s{P_BW+1}
    """)
    srd(a, sX, 4, 5, X_BYTES)
    srd(a, sW, 6, 7, W_BYTES)
    srd(a, S_WS, P_WS, P_WS + 1, WS_SIZE, WS_BASE)
    srd(a, S_DBG, P_DBG, P_DBG + 1, 256)
    vZ = V.alloc(4, 4)
    s_zf = 39
    a(f"""
    s_lshl_b32 s{s_t}, s2, 3
    s_add_u32 s{s_t}, s{s_t}, s{s_w}
    s_cmp_eq_u32 s{s_t}, 7
    s_cselect_b32 s{s_zf}, 1, 0
    s_cbranch_scc0 {name}_nozero
    v_lshlrev_b32 v{t0}, 4, v0
    v_mov_b32 v{vZ}, 0
    v_mov_b32 v{vZ+1}, 0
    v_mov_b32 v{vZ+2}, 0
    v_mov_b32 v{vZ+3}, 0
    """)
    for n in range(FLG_BYTES // 1024):
        a(f"s_mov_b32 s{s_t}, {FLG + 1024*n}")
        a(f"buffer_store_dwordx4 v[{vZ}:{vZ+3}], v{t0}, {WSR}, s{s_t} offen sc1")
    a.label(f"{name}_nozero")

    def dma_chunk(c, nl):
        st = c % 3
        a(f"s_add_u32 s{s_sx}, s{s_xo}, {128*c}")
        for n in range(4):
            a(f"s_add_u32 m0, s{s_mx}, {XST(st) + 1024*n}")
            if n: a(f"s_add_u32 s{s_sx}, s{s_sx}, {8*896}")
            else: a("s_nop 0")
            a(f"buffer_load_dwordx4 v{vX[n & 1]}, s[{sX}:{sX+3}], s{s_sx} offen lds")
        for L in range(nl):
            for n in range(2):
                a(f"s_add_u32 m0, s{s_mw}, {WST(st) + 8192*L + 1024*n}")
                a(f"s_add_u32 s{s_sw}, s{s_wo}, {(64*c + 8*n)*2688 + 128*L}")
                a(f"buffer_load_dwordx4 v{vW}, s[{sW}:{sW+3}], s{s_sw} offen lds")

    def loader(nl):
        a.label(f"{name}_ld{nl}")
        vm0 = a.vm_n
        m = {}
        for c in range(3):
            dma_chunk(c, nl); m[c] = a.vm_mark()
            if c == 0: a.stamp(1)
        for c in range(7):
            a.wait_vm(m[c]); a("s_barrier")
            if c == 0:
                a(f"s_cmp_eq_u32 s{s_zf}, 1\ns_cbranch_scc0 {name}_ld{nl}_nz\ns_mov_b32 s{s_t}, 0")
                arrive(a, f"s[{S_DBG}:{S_DBG+3}]", s_t, t0, t1)
                a.vm_n -= 1
                a.label(f"{name}_ld{nl}_nz")
            if c >= 1 and c + 2 <= 6:
                dma_chunk(c + 2, nl); m[c + 2] = a.vm_mark()
        a(f"s_branch {name}_ld_done")
        a.vm_n = vm0
    a(f"s_cmp_eq_u32 s{s_nl}, 3\ns_cbranch_scc1 {name}_ld3")
    loader(4)
    loader(3)

    a.label(f"{name}_p1c")
    s_rp, s_cp, s_u, s_st, s_scale = 60, 61, 62, 63, 4
    vXa = [V.alloc() for _ in range(4)]
    vWa = [[V.alloc() for s_ in range(3)] for st in range(3)]
    vL = V.alloc()
    a(f"""
    s_and_b32 s{s_rp}, s{s_w}, 1
    s_lshr_b32 s{s_cp}, s{s_w}, 1
    s_lshl_b32 s{s_u}, s{s_j}, 1
    s_add_u32 s{s_u}, s{s_u}, s{s_cp}
    s_lshl_b32 s{s_t}, s{s_rp}, 13
    v_and_b32 v{t0}, 31, v0
    v_lshlrev_b32 v{t0}, 7, v{t0}
    v_add_u32 v{t0}, s{s_t}, v{t0}
    v_lshrrev_b32 v{t1}, 5, v0
    v_bfe_u32 v{t2}, v0, 1, 3
    v_xor_b32 v{t1}, v{t1}, v{t2}
    v_lshl_add_u32 v{vXa[0]}, v{t1}, 4, v{t0}
    v_xor_b32 v{vXa[1]}, 32, v{vXa[0]}
    v_xor_b32 v{vXa[2]}, 64, v{vXa[0]}
    v_xor_b32 v{vXa[3]}, 96, v{vXa[0]}
    v_lshlrev_b32 v{vL}, 4, v0
    v_lshrrev_b32 v{t0}, 5, v0
    v_lshlrev_b32 v{t0}, 3, v{t0}
    v_bfe_u32 v{t1}, v0, 2, 2
    v_add_u32 v{t0}, v{t0}, v{t1}
    v_lshlrev_b32 v{t0}, 7, v{t0}
    v_bfe_u32 v{t1}, v0, 4, 1
    v_lshlrev_b32 v{t1}, 5, v{t1}
    v_and_b32 v{t2}, 3, v0
    v_lshl_add_u32 v{t1}, v{t2}, 3, v{t1}
    v_bfe_u32 v{t2}, v0, 3, 1
    v_lshlrev_b32 v{t2}, 6, v{t2}
    s_mul_i32 s{s_t}, s{s_cp}, 168
    s_add_u32 s{s_t}, s{s_t}, s{s_off}
    """)
    for s_ in range(3):
        a(f"""
        s_add_u32 s{s_t2}, s{s_t}, {56*s_}
        v_add_u32 v{t3}, s{s_t2}, v{t1}
        v_lshrrev_b32 v{vWa[0][s_]}, 7, v{t3}
        v_lshlrev_b32 v{vWa[0][s_]}, 13, v{vWa[0][s_]}
        v_and_b32 v{t3}, 127, v{t3}
        v_xor_b32 v{t3}, v{t3}, v{t2}
        v_add3_u32 v{vWa[0][s_]}, v{vWa[0][s_]}, v{t3}, v{t0}
        v_add_u32 v{vWa[0][s_]}, {WST(0)}, v{vWa[0][s_]}
        v_add_u32 v{vWa[1][s_]}, 32768, v{vWa[0][s_]}
        v_add_u32 v{vWa[2][s_]}, 65536, v{vWa[0][s_]}
        """)
    a("s_waitcnt lgkmcnt(0)")
    srd(a, S_WS, P_WS, P_WS + 1, WS_SIZE, WS_BASE)
    srd(a, S_DBG, P_DBG, P_DBG + 1, 256)
    a(f"""
    s_mul_i32 s{s_st}, s{s_br}, {BR_STRIDE}
    s_mul_i32 s{s_t}, s{s_u}, {3*131072}
    s_add_u32 s{s_st}, s{s_st}, s{s_t}
    s_lshl_b32 s{s_t}, s{s_rb}, 13
    s_add_u32 s{s_st}, s{s_st}, s{s_t}
    s_lshl_b32 s{s_t}, s{s_rp}, 12
    s_add_u32 s{s_st}, s{s_st}, s{s_t}
    s_mov_b32 s{s_hi}, 0
    s_mov_b32 s{s_hi+1}, -1
    """)
    vPadV = V.alloc(); vZc = V.alloc()
    a(f"""
    v_and_b32 v{t0}, 31, v0
    v_cmp_eq_u32 vcc, 28, v{t0}
    v_mov_b32 v{t1}, {ONES2}
    v_cndmask_b32 v{vPadV}, 0, v{t1}, vcc
    """)

    acc = [[V.alloc(16, 4) for j in range(3)] for _ in range(2)]
    fX = [[V.alloc(4, 4) for _ in range(2)] for _ in range(2)]
    fW = [[V.alloc(4, 4) for _ in range(3)] for _ in range(2)]
    vD = V.alloc(16, 4)

    def rd_x(c, t, buf, aa): return f"ds_read_b128 v[{fX[buf][aa]}:{fX[buf][aa]+3}], v{vXa[t]} offset:{XST(c % 3) + 4096*aa}"
    def rd_w(c, t, buf, s_, u): return f"ds_read_b64_tr_b16 v[{fW[buf][s_]+2*u}:{fW[buf][s_]+2*u+1}], v{vWa[c % 3][s_]} offset:{(16*t+4*u)*128}"
    def reads(c, t, buf):
        return [("x0", rd_x(c, t, buf, 0)), ("w0", rd_w(c, t, buf, 0, 0)), ("w0", rd_w(c, t, buf, 0, 1)), ("w1", rd_w(c, t, buf, 1, 0)),
                ("w1", rd_w(c, t, buf, 1, 1)), ("x1", rd_x(c, t, buf, 1)), ("w2", rd_w(c, t, buf, 2, 0)), ("w2", rd_w(c, t, buf, 2, 1))]

    def variant(tag, forms):
        a.label(f"{name}_{tag}")
        vm0, lg0 = a.vm_n, a.lg_n
        a("s_barrier")
        a.stamp(3)
        lm = {}
        for key, r in reads(0, 0, 0): a(r); lm[key] = a.lg_mark()
        buf = 0
        for c in range(7):
            for t in range(4):
                last = (c == 6 and t == 3)
                if t == 3 and c < 6:
                    a("s_waitcnt lgkmcnt(0)\ns_barrier")
                nxt = [] if last else (reads(c, t + 1, buf ^ 1) if t < 3 else reads(c + 1, 0, buf ^ 1))
                if "nords" in exp: nxt = []
                nlm = {}
                order = [((0, 0), ("x0", "w0")), ((0, 1), ("w1",)), ((1, 0), ("x1",)), ((1, 1), ()), ((0, 2), ("w2",)), ((1, 2), ())]
                for k, ((aa, s_), needs) in enumerate(order):
                    if needs and not (t == 3 and c < 6) and "nords" not in exp:
                        a.wait_lg(max(lm[x] for x in needs))
                    C = "0" if (c == 0 and t == 0) else f"v[{acc[aa][s_]}:{acc[aa][s_]+15}]"
                    X = f"v[{fX[buf][aa]}:{fX[buf][aa]+3}]"; W = f"v[{fW[buf][s_]}:{fW[buf][s_]+3}]"
                    A_, B_ = (W, X) if forms[s_] == "T" else (X, W)
                    a(f"v_mfma_f32_32x32x16_bf16 v[{acc[aa][s_]}:{acc[aa][s_]+15}], {A_}, {B_}, {C}")
                    for key, r in nxt[2 * k: 2 * k + 2]: a(r); nlm[key] = a.lg_mark()
                    if c == 4 and t == 0 and k == 5:
                        a(f"v_mov_b32 v{vZc}, 0\nbuffer_load_dword v{vZc}, v{vZc}, s[{S_DBG}:{S_DBG+3}], 0 offen sc1")
                lm = nlm
                buf ^= 1
        a.stamp(4)
        n = 0
        for s_ in range(3):
            if forms[s_] == "T":
                a(f"""
                s_mul_i32 s{s_t}, s{s_u}, 3
                s_add_u32 s{s_t}, s{s_t}, {s_}
                s_cmp_lt_u32 s{s_t}, 16
                s_cselect_b32 s{s_t}, s{s_br}, 0
                s_cmp_eq_u32 s{s_t}, 1
                s_cbranch_scc0 {name}_{tag}_ns{s_}
                s_mov_b32 s{s_scale}, {hex(f32bits(QSCALE))}
                s_mov_b32 s{s_scale+1}, {hex(f32bits(QSCALE))}
                """)
                for aa in range(2):
                    for i in range(0, 16, 2):
                        r = acc[aa][s_] + i
                        a(f"v_pk_mul_f32 v[{r}:{r+1}], v[{r}:{r+1}], s[{s_scale}:{s_scale+1}]")
                a.label(f"{name}_{tag}_ns{s_}")
            a(f"s_add_u32 s{s_t}, s{s_st}, {131072*s_}")
            for aa in range(2):
                d = vD + 8 * (n & 1); n += 1
                A = acc[aa][s_]
                for i in range(8): a(f"v_cvt_pk_bf16_f32 v{d+i}, v{A+2*i}, v{A+2*i+1}")
                if forms[s_] == "T":
                    a(f"s_mov_b64 exec, s[{s_hi}:{s_hi+1}]\nv_mov_b32 v{d+6}, {ONES2}\nv_mov_b32 v{d+7}, 0x00003f80\ns_mov_b64 exec, -1")
                else:
                    a("s_mov_b32 exec_lo, 0xf0000000\ns_mov_b32 exec_hi, 0xf0000000")
                    for i in range(8): a(f"v_mov_b32 v{d+i}, v{vPadV}")
                    a("s_mov_b64 exec, -1")
                for st in range(2):
                    a(f"buffer_store_dwordx4 v[{d+4*st}:{d+4*st+3}], v{vL}, {WSR}, s{s_t} offen offset:{2048*aa + 1024*st} {store_mod}")
        a.stamp(5)
        a("s_waitcnt vmcnt(0)")
        a.stamp(2)
        a(f"s_branch {name}_p1_end")
        a.vm_n, a.lg_n = vm0, lg0

    a(f"""
    s_cmp_eq_u32 s{s_u}, 10
    s_cbranch_scc1 {name}_TTN
    s_cmp_gt_u32 s{s_u}, 10
    s_cbranch_scc1 {name}_NNN
    """)
    variant("TTT", "TTT")
    variant("TTN", "TTN")
    variant("NNN", "NNN")

    a.label(f"{name}_ld_done")
    return V, dict(t=(t0, t1, t2, t3), vZc=vZc)


def phase1_end(a, name, regs):
    t0, t1, t2, t3 = regs["t"]; vZc = regs["vZc"]
    a.label(f"{name}_p1_end")
    a(f"""
    s_barrier
    s_cmp_eq_u32 s{s_w}, 0
    s_cbranch_scc0 {name}_s1_wait
    v_readfirstlane_b32 s{s_t}, v{vZc}
    s_cmp_ge_u32 s{s_t}, 1
    s_cbranch_scc1 {name}_zc_ok
    v_mov_b32 v{t0}, 0
    v_mov_b32 v{t1}, 1
    """)
    poll(a, f"{name}_zcp", f"s[{S_DBG}:{S_DBG+3}]", t0, t2, t1, 400000)
    a.label(f"{name}_zc_ok")
    a(f"""
    s_lshl_b32 s{s_t}, s{s_br}, 3
    s_add_u32 s{s_t}, s{s_t}, s{s_ct}
    s_lshl_b32 s{s_t}, s{s_t}, 7
    s_add_u32 s{s_t}, s{s_t}, {F_S1}
    """)
    a.stamp(13)
    arrive(a, WSR, s_t, t0, t1)
    if a.stamps: a("s_waitcnt vmcnt(0)")
    a.stamp(14)
    a.label(f"{name}_s1_wait")
```

```python
from fcommon import *

KL2 = 14


def loader_jobs(a, name):
    V = Regs("v", 1, 255)
    t0, t1, t2 = [V.alloc() for _ in range(3)]
    d = V.alloc(2, 2)
    sPH, sWO = S_A, S_B
    s_lw = 60
    a(f"""
    s_lshl_b32 s{s_t}, s{s_x}, 1
    s_and_b32 s{s_t2}, s{s_i}, 1
    s_add_u32 s{s_head}, s{s_t}, s{s_t2}
    s_mov_b32 s{sPH}, s{P_APHI}
    s_mov_b32 s{sPH+1}, s{P_APHI+1}
    s_add_u32 s{s_t}, s{s_head}, 1
    s_mul_i32 s{sPH+2}, s{s_t}, 1568
    s_mov_b32 s{sPH+3}, 0x00020000
    s_mul_i32 s{s_t}, s{s_head}, 1568
    s_lshl_b32 s{s_t2}, s{s_lw}, 9
    v_lshl_add_u32 v{t2}, v0, 3, s{s_t2}
    buffer_load_dwordx2 v[{d}:{d+1}], v{t2}, s[{sPH}:{sPH+3}], s{s_t} offen
    s_cmp_eq_u32 s{s_br}, 0
    s_cselect_b32 s4, s{P_AWO}, s{P_BWO}
    s_cselect_b32 s5, s{P_AWO+1}, s{P_BWO+1}
    """)
    m = a.vm_mark()
    srd(a, sWO, 4, 5, WO_BYTES)
    a(f"""
    v_lshrrev_b32 v{t0}, 3, v0
    v_mul_u32_u24 v{t0}, 896, v{t0}
    v_bfe_u32 v{t1}, v0, 4, 1
    v_lshlrev_b32 v{t1}, 2, v{t1}
    """)
    u = V.alloc()
    a(f"""
    v_and_b32 v{u}, 7, v0
    v_xor_b32 v{t1}, v{t1}, v{u}
    v_lshl_add_u32 v{t0}, v{t1}, 4, v{t0}
    s_mul_i32 s{s_t}, s{s_lw}, {8*896}
    s_lshl_b32 s{s_t2}, s{s_ct}, 7
    s_add_u32 s{s_t}, s{s_t}, s{s_t2}
    s_cmp_lt_u32 s{s_i}, 28
    s_cselect_b32 s{s_t}, s{s_t}, 0x40000000
    s_lshl_b32 s{s_t2}, s{s_lw}, 10
    """)
    for n in range(15):
        a(f"s_add_u32 m0, s{s_t2}, {WO + 4096*n}")
        a(f"s_add_u32 s{s_t3}, s{s_t}, {32*896*n}")
        a(f"buffer_load_dwordx4 v{t0}, s[{sWO}:{sWO+3}], s{s_t3} offen lds")
    a.wait_vm(m)
    a(f"""
    v_add_u32 v{t2}, {WPH}, v{t2}
    ds_write_b64 v{t2}, v[{d}:{d+1}]
    v_mov_b32 v{t1}, 0
    v_mov_b32 v{u}, {CNT}
    ds_write_b32 v{u}, v{t1}
    ds_write_b32 v{u}, v{t1} offset:4
    ds_write_b32 v{u}, v{t1} offset:8
    s_waitcnt vmcnt(0) lgkmcnt(0)
    """)


def phase23(a, name, s1_sleep=1, diag_s1=False, spin_max=400000, force_exact=False, prio=True, kl2=KL2, exp=""):
    V = Regs("v", 1, 255)
    sPH, sWO = S_A, S_B
    s_g, s_c = 60, 61
    s_k, s_v, s_q, s_of, s_att, s_kb = 62, 63, 64, 65, 66, 67
    s_log2e, s_a, s_fl, s_j = 33, 39, 4, 5
    s_m0, s_m1 = 6, 2
    s_wg = 3
    vL16 = V.alloc()
    t0 = V.alloc(4, 2)
    t1, t2, t3 = t0 + 1, t0 + 2, t0 + 3
    vT = V.alloc()
    vDum = V.alloc()
    Q = [V.alloc(8, 4) for _ in range(2)]
    KR = [V.alloc(8, 4) for _ in range(4)]
    VR = [V.alloc(8, 4) for _ in range(4)]
    O = [V.alloc(16, 4) for _ in range(2)]
    S = [V.alloc(16, 4) for _ in range(2)]
    P = V.alloc(8, 4)
    X = V.alloc(48, 4)

    a(f"""
    s_lshl_b32 s{s_t}, s{s_x}, 1
    s_and_b32 s{s_t2}, s{s_i}, 1
    s_add_u32 s{s_head}, s{s_t}, s{s_t2}
    s_lshr_b32 s{s_qb}, s{s_i}, 1
    v_lshlrev_b32 v{vL16}, 4, v0
    s_mov_b32 s{s_hi}, 0
    s_mov_b32 s{s_hi+1}, -1
    s_mov_b32 s{s_att}, 0
    s_mov_b32 s{s_log2e}, {hex(f32bits(LOG2E))}
    s_and_b32 s{s_g}, s{s_w}, 1
    s_lshr_b32 s{s_c}, s{s_w}, 1
    s_lshl_b32 s{s_a}, s{s_head}, 17
    s_lshl_b32 s{s_t}, s{s_qb}, 2
    s_lshl_b32 s{s_t2}, s{s_g}, 1
    s_add_u32 s{s_t}, s{s_t}, s{s_t2}
    s_lshl_b32 s{s_t}, s{s_t}, 11
    s_add_u32 s{s_q}, s{s_t}, s{s_a}
    s_add_u32 s{s_q}, s{s_q}, {BR_STRIDE + QF}
    s_add_u32 s{s_t}, s{s_a}, {BR_STRIDE + KF}
    s_lshl_b32 s{s_t2}, s{s_c}, 15
    s_add_u32 s{s_kb}, s{s_t}, s{s_t2}
    s_cmp_eq_u32 s{s_w}, 0
    s_cbranch_scc0 {name}_s1_ok
    v_min_u32 v{t0}, 15, v0
    v_lshlrev_b32 v{t0}, 7, v{t0}
    v_add_u32 v{t0}, {F_S1}, v{t0}
    v_mov_b32 v{t1}, 16
    """)
    poll(a, f"{name}_s1p", WSR, t0, t2, t1, spin_max, sleep=s1_sleep)
    a.label(f"{name}_s1_ok")
    a("s_barrier")
    a.stamp(6)

    def load_q():
        for ab in range(2):
            for st in range(2):
                a(f"buffer_load_dwordx4 v[{Q[ab]+4*st}:{Q[ab]+4*st+3}], v{vL16}, {WSR}, s{s_q} offen offset:{2048*ab + 1024*st}")
    def kv_soff(j):
        a(f"s_add_u32 s{s_k}, s{s_kb}, {(j & ~1) * 2048}")
        a(f"s_add_u32 s{s_v}, s{s_kb}, {(j & ~1) * 2048 + (VF - KF)}")
    def load_k(j):
        return [f"buffer_load_dwordx4 v[{KR[j%4]+4*st}:{KR[j%4]+4*st+3}], v{vL16}, {WSR}, s{s_k} offen offset:{(j&1)*2048 + 1024*st}" for st in range(2)]
    def load_v(j):
        return [f"buffer_load_dwordx4 v[{VR[j%4]+4*st}:{VR[j%4]+4*st+3}], v{vL16}, {WSR}, s{s_v} offen offset:{(j&1)*2048 + 1024*st}" for st in range(2)]
    mk, mv = {}, {}
    def ring_prologue(js=(0, 1, 2)):
        for j in js:
            if j % 2 == 0: kv_soff(j)
            for x in load_k(j): a(x)
            mk[j] = a.vm_mark()
            for x in load_v(j): a(x)
            mv[j] = a.vm_mark()

    kf = X
    vfA = O[0]
    a(f"""
    s_cmp_lt_u32 s{s_w}, 4
    s_cbranch_scc0 {name}_pro_common
    s_lshl_b32 s{s_t2}, s{s_qb}, 2
    s_add_u32 s{s_t}, s{s_w}, s{s_t2}
    s_lshl_b32 s{s_t}, s{s_t}, 11
    s_add_u32 s{s_t}, s{s_t}, s{s_a}
    s_add_u32 s{s_t}, s{s_t}, {KF}
    buffer_load_dwordx4 v[{kf}:{kf+3}], v{vL16}, {WSR}, s{s_t} offen
    buffer_load_dwordx4 v[{kf+4}:{kf+7}], v{vL16}, {WSR}, s{s_t} offen offset:1024
    s_cmp_lt_u32 s{s_w}, 2
    s_cbranch_scc0 {name}_pro_common
    s_lshl_b32 s{s_t}, s{s_qb}, 13
    s_add_u32 s{s_t}, s{s_t}, s{s_a}
    s_add_u32 s{s_t}, s{s_t}, {VF}
    s_add_u32 s{s_t2}, s{s_t}, 4096
    """)
    for rt in range(4):
        for st in range(2):
            r = vfA + 8 * rt + 4 * st
            a(f"buffer_load_dwordx4 v[{r}:{r+3}], v{vL16}, {WSR}, s{s_t if rt < 2 else s_t2} offen offset:{(rt&1)*2048 + 1024*st}")
    a.label(f"{name}_pro_common")
    load_q()
    K0 = KR[3]
    a(f"""
    s_add_u32 s{s_t}, s{s_a}, {BR_STRIDE + KF}
    buffer_load_dwordx4 v[{K0}:{K0+3}], v{vL16}, {WSR}, s{s_t} offen
    buffer_load_dwordx4 v[{K0+4}:{K0+7}], v{vL16}, {WSR}, s{s_t} offen offset:1024
    """)
    m_k0 = a.vm_mark()
    ring_prologue((0,))
    if "nopf" not in exp:
        a(f"""
        v_lshlrev_b32 v{t0}, 7, v0
        s_lshl_b32 s{s_t}, s{s_qb}, 13
        s_add_u32 s{s_t}, s{s_t}, s{s_a}
        s_mov_b32 s{s_t2}, 0x40000000
        s_cmp_eq_u32 s{s_w}, 5
        s_cselect_b32 s{s_t2}, {BR_STRIDE + KF}, s{s_t2}
        s_cmp_eq_u32 s{s_w}, 6
        s_cselect_b32 s{s_t2}, {BR_STRIDE + VF}, s{s_t2}
        s_cmp_eq_u32 s{s_w}, 7
        s_cselect_b32 s{s_t2}, {QF}, s{s_t2}
        s_add_u32 s{s_t}, s{s_t}, s{s_t2}
        buffer_load_dword v{vDum}, v{t0}, {WSR}, s{s_t} offen
        """)
    a(f"s_cmp_lt_u32 s{s_w}, 4\ns_cbranch_scc0 {name}_att_m")
    if "noA" in exp: a(f"s_branch {name}_att_m")

    def wphi_frags(dst):
        a(f"""
        v_lshrrev_b32 v{t0}, 5, v0
        v_lshlrev_b32 v{t0}, 2, v{t0}
        v_bfe_u32 v{t1}, v0, 2, 2
        v_add_u32 v{t0}, v{t0}, v{t1}
        v_mul_u32_u24 v{t0}, 56, v{t0}
        v_bfe_u32 v{t1}, v0, 4, 1
        v_lshl_add_u32 v{t0}, v{t1}, 5, v{t0}
        v_and_b32 v{t2}, 3, v0
        v_lshl_add_u32 v{t0}, v{t2}, 3, v{t0}
        v_add_u32 v{t0}, {WPH}, v{t0}
        """)
        for st in range(2):
            for u in range(2):
                a(f"ds_read_b64_tr_b16 v[{dst+4*st+2*u}:{dst+4*st+2*u+1}], v{t0} offset:{(16*st + 8*u)*56}")

    def xhalf(op, r, tmp_a, tmp_b):
        a(f"v_mov_b32 v{tmp_a}, v{r}")
        a(f"v_mov_b32 v{tmp_b}, v{r}")
        a(f"v_permlane32_swap_b32 v{tmp_a}, v{tmp_b}")
        a(f"{op} v{r}, v{tmp_a}, v{tmp_b}")

    def features(xf, wf, p, e, phi):
        a(f"v_mfma_f32_32x32x16_bf16 v[{p}:{p+15}], v[{wf}:{wf+3}], v[{xf}:{xf+3}], 0")
        a(f"v_mfma_f32_32x32x16_bf16 v[{p}:{p+15}], v[{wf+4}:{wf+7}], v[{xf+4}:{xf+7}], v[{p}:{p+15}]")
        a(f"s_mov_b64 exec, s[{s_hi}:{s_hi+1}]")
        for i in range(4): a(f"v_mov_b32 v{p+12+i}, v{p+8+i}")
        a("s_mov_b64 exec, -1")
        a(f"v_max3_f32 v{t0}, v{p}, v{p+1}, v{p+2}")
        a(f"v_min3_f32 v{t1}, v{p}, v{p+1}, v{p+2}")
        for i in range(3, 15, 2):
            a(f"v_max3_f32 v{t0}, v{t0}, v{p+i}, v{p+i+1}")
            a(f"v_min3_f32 v{t1}, v{t1}, v{p+i}, v{p+i+1}")
        a(f"v_max_f32 v{t0}, v{t0}, v{p+15}")
        a(f"v_min_f32 v{t1}, v{t1}, v{p+15}")
        xhalf("v_max_f32", t0, t2, t3)
        xhalf("v_min_f32", t1, t2, t3)
        m2 = e
        a(f"v_mul_f32 v{t0}, s{s_log2e}, v{t0}")
        a(f"v_mul_f32 v{t1}, s{s_log2e}, v{t1}")
        for sign in range(2):
            for i in range(16):
                if sign == 0: a(f"v_fma_f32 v{e+i}, v{p+i}, s{s_log2e}, -v{t0}")
                else:         a(f"v_fma_f32 v{e+i}, -v{p+i}, s{s_log2e}, v{t1}")
            for i in range(16): a(f"v_exp_f32 v{e+i}, v{e+i}")
            a(f"s_mov_b64 exec, s[{s_hi}:{s_hi+1}]")
            for i in range(4): a(f"v_mov_b32 v{e+12+i}, 0")
            a("s_mov_b64 exec, -1")
            sm = vT
            a(f"v_pk_add_f32 v[{phi+8*sign}:{phi+8*sign+1}], v[{e}:{e+1}], v[{e+2}:{e+3}]")
            for i in range(4, 16, 2):
                a(f"v_pk_add_f32 v[{phi+8*sign}:{phi+8*sign+1}], v[{phi+8*sign}:{phi+8*sign+1}], v[{e+i}:{e+i+1}]")
            a(f"v_add_f32 v{sm}, v{phi+8*sign}, v{phi+8*sign+1}")
            xhalf("v_add_f32", sm, t2, t3)
            a(f"v_rcp_f32 v{sm}, v{sm}")
            a(f"s_nop 0")
            a(f"v_mov_b32 v{t2}, v{sm}")
            a(f"v_mov_b32 v{t3}, v{sm}")
            assert t3 == t2 + 1 and t2 % 2 == 0
            for i in range(0, 16, 2): a(f"v_pk_mul_f32 v[{e+i}:{e+i+1}], v[{e+i}:{e+i+1}], v[{t2}:{t3}]")
            for i in range(8): a(f"v_cvt_pk_bf16_f32 v{phi+8*sign+i}, v{e+2*i}, v{e+2*i+1}")

    def spin(label, off_sgpr, target):
        a(f"v_mov_b32 v{t0}, s{off_sgpr}\nv_mov_b32 v{t1}, {target}")
        poll(a, label, WSR, t0, t2, t1, spin_max)

    def signal(off_sgpr):
        a("s_waitcnt vmcnt(0)")
        arrive(a, WSR, off_sgpr, t0, t1)

    wf = X + 8; phi = X + 16; pp = S[0]; ee = S[1]
    if prio: a("s_setprio 2")
    wphi_frags(wf)
    vm_save = a.vm_n
    a(f"s_waitcnt vmcnt({vm_save - m_k0 + 6}) lgkmcnt(0)")
    features(kf, wf, pp, ee, phi)
    a(f"""
    s_mul_i32 s{s_t}, s{s_w}, 2304
    v_and_b32 v{t0}, 31, v0
    v_mul_u32_u24 v{t0}, 72, v{t0}
    v_lshrrev_b32 v{t1}, 5, v0
    v_lshlrev_b32 v{t1}, 3, v{t1}
    v_add3_u32 v{t0}, v{t0}, v{t1}, s{s_t}
    """)
    for sign in range(2):
        for gg in range(4):
            r = phi + 8 * sign + 2 * gg
            a(f"ds_write_b64 v{t0}, v[{r}:{r+1}] offset:{PH + sign*4*2304 + 16*gg}")
    a(f"""
    s_waitcnt lgkmcnt(0)
    v_mov_b32 v{t1}, {CNT}
    v_mov_b32 v{t2}, 1
    s_mov_b64 exec, 1
    ds_add_u32 v{t1}, v{t2}
    s_mov_b64 exec, -1
    s_cmp_lt_u32 s{s_w}, 2
    s_cbranch_scc0 {name}_kv_done
    s_mov_b32 s{s_spin}, 0
    """)
    a.label(f"{name}_phi_wait")
    a(f"""
    ds_read_b32 v{t2}, v{t1}
    s_add_u32 s{s_spin}, s{s_spin}, 1
    s_waitcnt lgkmcnt(0)
    v_readfirstlane_b32 s{s_t}, v{t2}
    s_cmp_ge_u32 s{s_t}, 4
    s_cbranch_scc1 {name}_phi_ok
    s_cmp_ge_u32 s{s_spin}, {spin_max}
    s_cbranch_scc1 {name}_phi_ok
    s_branch {name}_phi_wait
    """)
    a.label(f"{name}_phi_ok")
    af = S[1]; acc = S[0]
    a(f"""
    s_mul_i32 s{s_t}, s{s_w}, {4*2304}
    v_lshrrev_b32 v{t0}, 5, v0
    v_lshlrev_b32 v{t0}, 2, v{t0}
    v_bfe_u32 v{t1}, v0, 2, 2
    v_add_u32 v{t0}, v{t0}, v{t1}
    v_mul_u32_u24 v{t0}, 72, v{t0}
    v_bfe_u32 v{t1}, v0, 4, 1
    v_lshl_add_u32 v{t0}, v{t1}, 5, v{t0}
    v_and_b32 v{t2}, 3, v0
    v_lshl_add_u32 v{t0}, v{t2}, 3, v{t0}
    v_add_u32 v{t0}, s{s_t}, v{t0}
    """)
    fr = X + 16
    for rt in range(4):
        for st in range(2):
            for u in range(2):
                b = fr + 8 * rt + 4 * st + 2 * u
                a(f"ds_read_b64_tr_b16 v[{b}:{b+1}], v{t0} offset:{PH + rt*2304 + (16*st + 8*u)*72}")
        if rt == 1: a("s_waitcnt lgkmcnt(0)")
    a("s_waitcnt vmcnt(0) lgkmcnt(0)")
    for rt in range(4):
        for st in range(2):
            C = "0" if (rt == 0 and st == 0) else f"v[{acc}:{acc+15}]"
            b = fr + 8 * rt + 4 * st
            a(f"v_mfma_f32_32x32x16_bf16 v[{acc}:{acc+15}], v[{b}:{b+3}], v[{vfA+8*rt+4*st}:{vfA+8*rt+4*st+3}], {C}")
    a(f"""
    s_lshl_b32 s{s_t}, s{s_head}, 4
    s_add_u32 s{s_t}, s{s_t}, s{s_qb}
    s_lshl_b32 s{s_t}, s{s_t}, 1
    s_add_u32 s{s_t}, s{s_t}, s{s_w}
    s_lshl_b32 s{s_t}, s{s_t}, 12
    s_add_u32 s{s_t}, s{s_t}, {KVP}
    """)
    for qd in range(4):
        a(f"buffer_store_dwordx4 v[{acc+4*qd}:{acc+4*qd+3}], v{vL16}, {WSR}, s{s_t} offen offset:{1024*qd} sc1")
    a(f"""
    s_waitcnt vmcnt(0)
    v_mov_b32 v{t1}, {CNT}
    v_mov_b32 v{t2}, 1
    s_mov_b64 exec, 1
    ds_add_rtn_u32 v{t3}, v{t1}, v{t2} offset:8
    s_waitcnt lgkmcnt(0)
    v_readfirstlane_b32 s{s_t}, v{t3}
    s_mov_b64 exec, -1
    s_cmp_eq_u32 s{s_t}, 1
    s_cbranch_scc0 {name}_kv_done
    s_lshl_b32 s{s_fl}, s{s_head}, 7
    s_add_u32 s{s_fl}, s{s_fl}, {F_KV1}
    """)
    arrive(a, WSR, s_fl, t0, t1)
    a.label(f"{name}_kv_done")
    a("s_waitcnt vmcnt(1) lgkmcnt(0)")
    a.vm_n = vm_save

    def level2():
        ld = X
        a(f"s_lshl_b32 s{s_fl}, s{s_head}, 7\ns_add_u32 s{s_fl}, s{s_fl}, {F_KV1}")
        spin(f"{name}_spin1", s_fl, 16)
        a(f"""
        s_lshr_b32 s{s_t2}, s{s_qb}, 2
        s_lshr_b32 s{s_t3}, s{s_t2}, 1
        s_and_b32 s{s_t2}, s{s_t2}, 1
        s_lshl_b32 s{s_t}, s{s_head}, 17
        s_lshl_b32 s{s_j}, s{s_t3}, 12
        s_add_u32 s{s_t}, s{s_t}, s{s_j}
        s_lshl_b32 s{s_j}, s{s_t2}, 11
        s_add_u32 s{s_t}, s{s_t}, s{s_j}
        s_add_u32 s{s_t}, s{s_t}, {KVP}
        s_and_b32 s{s_j}, s{s_qb}, 3
        s_lshl_b32 s{s_j}, s{s_j}, 8
        v_lshrrev_b32 v{t0}, 4, v0
        v_lshlrev_b32 v{t0}, 15, v{t0}
        v_and_b32 v{t1}, 15, v0
        v_lshl_add_u32 v{t0}, v{t1}, 4, v{t0}
        v_add_u32 v{t0}, s{s_j}, v{t0}
        """)
        for i in range(4):
            for qd in range(2):
                r = ld + 8 * i + 4 * qd
                a(f"buffer_load_dwordx4 v[{r}:{r+3}], v{t0}, {WSR}, s{s_t} offen offset:{1024*qd} sc1")
            if i < 3: a(f"s_add_u32 s{s_t}, s{s_t}, 8192")
        a("s_waitcnt vmcnt(0)")
        pk = lambda d, x, y: a(f"v_pk_add_f32 v[{d}:{d+1}], v[{x}:{x+1}], v[{y}:{y+1}]")
        for k in range(0, 8, 2):
            pk(ld + k, ld + k, ld + 8 + k); pk(ld + 16 + k, ld + 16 + k, ld + 24 + k)
        for k in range(0, 8, 2): pk(ld + k, ld + k, ld + 16 + k)
        for sw in ("v_permlane32_swap_b32", "v_permlane16_swap_b32"):
            for k in range(8): a(f"v_mov_b32 v{ld+8+k}, v{ld+k}")
            for k in range(8): a(f"{sw} v{ld+k}, v{ld+8+k}")
            for k in range(0, 8, 2): pk(ld + k, ld + k, ld + 8 + k)
        for k in range(4): a(f"v_cvt_pk_bf16_f32 v{ld+16+k}, v{ld+2*k}, v{ld+2*k+1}")
        a(f"""
        s_lshr_b32 s{s_t2}, s{s_qb}, 2
        s_lshl_b32 s{s_t}, s{s_head}, 2
        s_add_u32 s{s_t}, s{s_t}, s{s_t2}
        s_lshl_b32 s{s_t}, s{s_t}, 10
        s_add_u32 s{s_t}, s{s_t}, {KVF}
        s_and_b32 s{s_j}, s{s_qb}, 3
        s_lshl_b32 s{s_j}, s{s_j}, 8
        s_add_u32 s{s_t}, s{s_t}, s{s_j}
        s_mov_b64 exec, 0xffff
        buffer_store_dwordx4 v[{ld+16}:{ld+19}], v{vL16}, {WSR}, s{s_t} offen sc1
        s_mov_b64 exec, -1
        s_add_u32 s{s_fl}, s{s_fl}, {F_KV2 - F_KV1}
        """)
        signal(s_fl)

    def patch_q(ab, m):
        a(f"""
        v_xor_b32 v{t0}, 0x80000000, v{m}
        v_and_b32 v{t1}, 0xffff0000, v{t0}
        v_sub_f32 v{t0}, v{t0}, v{t1}
        v_and_b32 v{t2}, 0xffff0000, v{t0}
        v_sub_f32 v{t0}, v{t0}, v{t2}
        v_lshrrev_b32 v{t1}, 16, v{t1}
        v_or_b32 v{t1}, v{t1}, v{t2}
        v_lshrrev_b32 v{t0}, 16, v{t0}
        s_mov_b64 exec, s[{s_hi}:{s_hi+1}]
        v_mov_b32 v{Q[ab]+6}, v{t1}
        v_mov_b32 v{Q[ab]+7}, v{t0}
        s_mov_b64 exec, -1
        """)
    def zero_q_pads():
        a(f"s_mov_b64 exec, s[{s_hi}:{s_hi+1}]")
        for ab in range(2): a(f"v_mov_b32 v{Q[ab]+6}, 0\nv_mov_b32 v{Q[ab]+7}, 0")
        a("s_mov_b64 exec, -1")
    def qk(Sd, Kf, ab):
        return [f"v_mfma_f32_32x32x16_bf16 v[{Sd}:{Sd+15}], v[{Kf}:{Kf+3}], v[{Q[ab]}:{Q[ab]+3}], 0",
                f"v_mfma_f32_32x32x16_bf16 v[{Sd}:{Sd+15}], v[{Kf+4}:{Kf+7}], v[{Q[ab]+4}:{Q[ab]+7}], v[{Sd}:{Sd+15}]"]
    def max16(dst, r, init=None):
        if init is None:
            a(f"v_max3_f32 v{dst}, v{r}, v{r+1}, v{r+2}")
            for i in range(3, 15, 2): a(f"v_max3_f32 v{dst}, v{dst}, v{r+i}, v{r+i+1}")
            a(f"v_max_f32 v{dst}, v{dst}, v{r+15}")
        else:
            for i in range(0, 16, 2): a(f"v_max3_f32 v{dst}, v{dst}, v{r+i}, v{r+i+1}")

    a.label(f"{name}_att_m")
    a.stamp(7)
    a.wait_vm(m_k0)
    zero_q_pads()
    for ab in range(2):
        for x in qk(S[ab], K0, ab): a(x)
    ring_prologue((1, 2))
    mA, mB = P, P + 1
    max16(mA, S[0]); max16(mB, S[1])
    for ab, m in enumerate((mA, mB)):
        xhalf("v_max_f32", m, t2, t3)
        a(f"v_add_f32 v{m}, {hex(f32bits(M_OFFSET))}, v{m}")
        a(f"v_and_b32 v{m}, 0xffff0000, v{m}")
        a(f"v_xor_b32 v{t0}, 0x80000000, v{m}")
        a(f"v_lshrrev_b32 v{t0}, 16, v{t0}")
        a(f"s_mov_b64 exec, s[{s_hi}:{s_hi+1}]\nv_mov_b32 v{Q[ab]+6}, v{t0}\ns_mov_b64 exec, -1")
    if force_exact:
        a(f"s_mov_b64 exec, s[{s_hi}:{s_hi+1}]")
        for ab in range(2): a(f"v_mov_b32 v{Q[ab]+6}, 0x0000c380")
        a("s_mov_b64 exec, -1")

    a.label(f"{name}_att_go")
    a.stamp(8)
    a.wait_vm(mk[0])
    for x in qk(S[0], KR[0], 0): a(x)
    for t in range(32):
        j = t >> 1
        Sc, Sn = S[t & 1], S[(t + 1) & 1]
        if t == kl2 and "noA" not in exp:
            a(f"""
            s_lshl_b32 s{s_t}, s{s_att}, 3
            s_add_u32 s{s_t}, s{s_t}, s{s_w}
            s_cmp_eq_u32 s{s_t}, 3
            s_cbranch_scc0 {name}_l2_skip
            """)
            keep = a.vm_n
            level2()
            a.vm_n = keep
            a.label(f"{name}_l2_skip")
        for slot in range(4):
            r = Sc + 4 * slot
            a(f"v_exp_f32 v{r}, v{r}")
            a(f"v_exp_f32 v{r+1}, v{r+1}")
            if slot == 0 and t > 0:
                tp = t - 1
                a(f"v_mfma_f32_32x32x16_bf16 v[{O[tp&1]}:{O[tp&1]+15}], v[{VR[(tp>>1)%4]+4}:{VR[(tp>>1)%4]+7}], v[{P+4}:{P+7}], v[{O[tp&1]}:{O[tp&1]+15}]")
            if slot in (1, 2) and t < 31:
                jn = (t + 1) >> 1
                if slot == 1 and (t + 1) % 2 == 0 and jn in mk: a.wait_vm(mk[jn])
                a(qk(Sn, KR[jn % 4], (t + 1) & 1)[slot - 1])
            if slot == 3:
                if t % 2 == 0 and j in mv: a.wait_vm(mv[j])
                C = "0" if t < 2 else f"v[{O[t&1]}:{O[t&1]+15}]"
                a(f"v_mfma_f32_32x32x16_bf16 v[{O[t&1]}:{O[t&1]+15}], v[{VR[j%4]}:{VR[j%4]+3}], v[{P}:{P+3}], {C}")
            if t % 2 == 0 and j + 3 <= 15 and "noload" not in exp:
                jj = j + 3
                if slot == 1:
                    if jj % 2 == 0: kv_soff(jj)
                    for x in load_k(jj): a(x)
                    mk[jj] = a.vm_mark()
                if slot == 2:
                    for x in load_v(jj): a(x)
                    mv[jj] = a.vm_mark()
            a(f"v_exp_f32 v{r+2}, v{r+2}")
            a(f"v_exp_f32 v{r+3}, v{r+3}")
            a(f"v_cvt_pk_bf16_f32 v{P+2*slot}, v{r}, v{r+1}")
            a(f"v_cvt_pk_bf16_f32 v{P+2*slot+1}, v{r+2}, v{r+3}")
    a(f"s_nop 0\nv_mfma_f32_32x32x16_bf16 v[{O[1]}:{O[1]+15}], v[{VR[15%4]+4}:{VR[15%4]+7}], v[{P+4}:{P+7}], v[{O[1]}:{O[1]+15}]")
    a.stamp(9)

    vR = X
    a(f"""
    s_mul_i32 s{s_t}, s{s_g}, {6*4096}
    v_add_u32 v{vR}, s{s_t}, v{vL16}
    s_cmp_lt_u32 s{s_w}, 4
    s_cbranch_scc0 {name}_fin_late
    s_lshl_b32 s{s_t}, s{s_c}, 12
    v_add_u32 v{vR}, s{s_t}, v{vR}
    """)
    for ab in range(2):
        for qd in range(4):
            a(f"ds_write_b128 v{vR}, v[{O[ab]+4*qd}:{O[ab]+4*qd+3}] offset:{RED + ab*3*4096 + 1024*qd}")
    a(f"""
    s_cmp_eq_u32 s{s_att}, {1 if "noA" in exp else 0}
    s_cbranch_scc0 {name}_aend_done
    s_lshl_b32 s{s_t}, s{s_qb}, 2
    s_add_u32 s{s_j}, s{s_t}, s{s_w}
    s_lshl_b32 s{s_t}, s{s_j}, 11
    s_add_u32 s{s_t}, s{s_t}, s{s_a}
    s_add_u32 s{s_t}, s{s_t}, {QF}
    buffer_load_dwordx4 v[{kf+8}:{kf+11}], v{vL16}, {WSR}, s{s_t} offen
    buffer_load_dwordx4 v[{kf+12}:{kf+15}], v{vL16}, {WSR}, s{s_t} offen offset:1024
    """)
    qf = kf + 8; wf2 = kf + 16; phi2 = kf + 24
    kvf = O[0]
    wphi_frags(wf2)
    a("s_waitcnt vmcnt(0) lgkmcnt(0)")
    a(f"s_mov_b64 exec, s[{s_hi}:{s_hi+1}]\nv_mov_b32 v{qf+6}, 0\nv_mov_b32 v{qf+7}, 0\ns_mov_b64 exec, -1")
    features(qf, wf2, S[0], S[1], phi2)
    a(f"s_lshl_b32 s{s_fl}, s{s_head}, 7\ns_add_u32 s{s_fl}, s{s_fl}, {F_KV2}")
    spin(f"{name}_spin2", s_fl, 16)
    a(f"s_lshl_b32 s{s_t}, s{s_head}, 12\ns_add_u32 s{s_t}, s{s_t}, {KVF}")
    for f in range(4):
        a(f"buffer_load_dwordx4 v[{kvf+4*f}:{kvf+4*f+3}], v{vL16}, {WSR}, s{s_t} offen offset:{1024*f} sc1")
    accA = S[0]
    for f in range(4):
        a(f"s_waitcnt vmcnt({3-f})")
        C = "0" if f == 0 else f"v[{accA}:{accA+15}]"
        a(f"v_mfma_f32_32x32x16_bf16 v[{accA}:{accA+15}], v[{kvf+4*f}:{kvf+4*f+3}], v[{phi2+4*f}:{phi2+4*f+3}], {C}")

    def finish_tile(acc, eps, soff, check):
        a(f"v_mov_b32 v{t0}, v{acc+12}")
        a(f"v_mov_b32 v{t1}, v{acc+12}")
        a(f"v_permlane32_swap_b32 v{t0}, v{t1}")
        if eps: a(f"v_add_f32 v{t1}, {hex(f32bits(eps))}, v{t1}")
        a(f"v_rcp_f32 v{t2}, v{t1}")
        if check:
            a(f"v_cmp_le_f32 s[{s_m0}:{s_m0+1}], {hex(f32bits(L_LO))}, v{t1}".replace(f"s[{s_m0}:{s_m0+1}]", "vcc"))
            a(f"s_mov_b64 s[{s_m0}:{s_m0+1}], vcc")
            a(f"v_cmp_ge_f32 vcc, {hex(f32bits(L_HI))}, v{t1}")
            a(f"s_and_b64 s[{s_m0}:{s_m0+1}], s[{s_m0}:{s_m0+1}], vcc")
        a(f"v_mov_b32 v{t3}, v{t2}")
        for i in range(0, 16, 2): a(f"v_pk_mul_f32 v[{acc+i}:{acc+i+1}], v[{acc+i}:{acc+i+1}], v[{t2}:{t3}]")
        for i in range(8): a(f"v_cvt_pk_bf16_f32 v{P+i}, v{acc+2*i}, v{acc+2*i+1}")
        a(f"s_mov_b64 exec, s[{s_hi}:{s_hi+1}]\nv_mov_b32 v{P+6}, 0\nv_mov_b32 v{P+7}, 0\ns_mov_b64 exec, -1")
        for st in range(2):
            a(f"buffer_store_dwordx4 v[{P+4*st}:{P+4*st+3}], v{vL16}, {WSR}, s{soff} offen offset:{1024*st} sc1")

    a(f"s_lshl_b32 s{s_of}, s{s_j}, 4\ns_add_u32 s{s_of}, s{s_of}, s{s_head}\ns_lshl_b32 s{s_of}, s{s_of}, 11\ns_add_u32 s{s_of}, s{s_of}, {OFP}")
    finish_tile(accA, 1e-6, s_of, False)
    a.label(f"{name}_aend_done")
    a(f"s_waitcnt lgkmcnt(0)\ns_barrier\ns_branch {name}_fin_join")

    a.label(f"{name}_fin_late")
    def late(own):
        oth = 1 - own
        for qd in range(4):
            a(f"ds_write_b128 v{vR}, v[{O[oth]+4*qd}:{O[oth]+4*qd+3}] offset:{RED + oth*3*4096 + 2*4096 + 1024*qd}")
        a(f"""
        s_lshl_b32 s{s_t}, s{s_qb}, 2
        s_lshl_b32 s{s_t2}, s{s_g}, 1
        s_add_u32 s{s_t}, s{s_t}, s{s_t2}
        s_add_u32 s{s_t}, s{s_t}, {own}
        s_lshl_b32 s{s_of}, s{s_t}, 4
        s_add_u32 s{s_of}, s{s_of}, s{s_head}
        s_lshl_b32 s{s_of}, s{s_of}, 11
        s_add_u32 s{s_of}, s{s_of}, {OFP + 2*MB}
        s_waitcnt lgkmcnt(0)
        s_barrier
        """)
        bufs = [S[0], S[1], O[oth]]
        for src in range(3):
            for qd in range(4):
                a(f"ds_read_b128 v[{bufs[src]+4*qd}:{bufs[src]+4*qd+3}], v{vR} offset:{RED + own*3*4096 + src*4096 + 1024*qd}")
        for src in range(3):
            a(f"s_waitcnt lgkmcnt({8 - 4*src})")
            for i in range(0, 16, 2):
                a(f"v_pk_add_f32 v[{O[own]+i}:{O[own]+i+1}], v[{O[own]+i}:{O[own]+i+1}], v[{bufs[src]+i}:{bufs[src]+i+1}]")
        finish_tile(O[own], 0.0, s_of, True)
        a(f"""
        s_cmp_eq_u64 s[{s_m0}:{s_m0+1}], exec
        s_cbranch_scc1 {name}_fin_join
        v_mov_b32 v{t0}, {CNT}
        v_mov_b32 v{t1}, 1
        ds_write_b32 v{t0}, v{t1} offset:4
        s_branch {name}_fin_join
        """)
    a(f"s_cmp_eq_u32 s{s_c}, 2\ns_cbranch_scc0 {name}_fin_late_b")
    late(0)
    a.label(f"{name}_fin_late_b")
    late(1)

    a.label(f"{name}_fin_join")
    a.stamp(10)
    a(f"""
    s_waitcnt vmcnt(0) lgkmcnt(0)
    s_barrier
    v_mov_b32 v{t0}, {CNT}
    ds_read_b32 v{t1}, v{t0} offset:4
    s_waitcnt lgkmcnt(0)
    v_readfirstlane_b32 s{s_t}, v{t1}
    s_cmp_eq_u32 s{s_t}, 0
    s_cbranch_scc1 {name}_p2_done
    s_cmp_eq_u32 s{s_att}, 0
    s_cbranch_scc0 {name}_p2_done
    """)
    a(f"s_mov_b32 s{s_att}, 1")
    zero_q_pads()
    a(f"v_mov_b32 v{mA}, 0xff800000\nv_mov_b32 v{mB}, 0xff800000\ns_mov_b32 s{s_j}, 0")
    a.label(f"{name}_ex_loop")
    a(f"""
    s_lshl_b32 s{s_t}, s{s_j}, 11
    s_add_u32 s{s_t}, s{s_t}, s{s_kb}
    buffer_load_dwordx4 v[{K0}:{K0+3}], v{vL16}, {WSR}, s{s_t} offen
    buffer_load_dwordx4 v[{K0+4}:{K0+7}], v{vL16}, {WSR}, s{s_t} offen offset:1024
    s_waitcnt vmcnt(0)
    """)
    for ab in range(2):
        for x in qk(S[ab], K0, ab): a(x)
    max16(mA, S[0], init=True); max16(mB, S[1], init=True)
    a(f"s_add_u32 s{s_j}, s{s_j}, 1\ns_cmp_lt_u32 s{s_j}, 16\ns_cbranch_scc1 {name}_ex_loop")
    for m in (mA, mB): xhalf("v_max_f32", m, t2, t3)
    a(f"""
    s_lshl_b32 s{s_t}, s{s_g}, 10
    s_lshl_b32 s{s_t2}, s{s_c}, 7
    v_and_b32 v{t0}, 31, v0
    v_lshlrev_b32 v{t0}, 2, v{t0}
    v_add_u32 v{t0}, s{s_t}, v{t0}
    v_add_u32 v{t0}, {MX}, v{t0}
    v_add_u32 v{t1}, s{s_t2}, v{t0}
    ds_write_b32 v{t1}, v{mA}
    ds_write_b32 v{t1}, v{mB} offset:512
    s_waitcnt lgkmcnt(0)
    s_barrier
    """)
    for ab in range(2):
        for cc in range(4):
            a(f"ds_read_b32 v{S[0]+4*ab+cc}, v{t0} offset:{512*ab + 128*cc}")
    a("s_waitcnt lgkmcnt(0)")
    for ab, m in enumerate((mA, mB)):
        b = S[0] + 4 * ab
        a(f"v_max3_f32 v{m}, v{b}, v{b+1}, v{b+2}")
        a(f"v_max_f32 v{m}, v{m}, v{b+3}")
    for ab, m in enumerate((mA, mB)): patch_q(ab, m)
    a(f"""
    v_mov_b32 v{t0}, {CNT}
    v_mov_b32 v{t1}, 0
    ds_write_b32 v{t0}, v{t1} offset:4
    s_waitcnt lgkmcnt(0)
    s_barrier
    """)
    ring_prologue()
    a(f"s_waitcnt vmcnt(0)\ns_branch {name}_att_go")

    a.label(f"{name}_p2_done")
    a.stamp(11)
    a(f"s_cmp_lt_u32 s{s_w}, 4\ns_cbranch_scc0 {name}_exit")
    a(f"s_cmp_eq_u32 s{s_w}, 0\ns_cbranch_scc0 {name}_p3_go")
    a(f"s_lshl_b32 s{s_t}, s{s_qb}, 7\ns_add_u32 s{s_t}, s{s_t}, {F_O}")
    arrive(a, WSR, s_t, t0, t1)
    a.label(f"{name}_p3_go")
    a(f"s_cmp_lt_u32 s{s_i}, 28\ns_cbranch_scc0 {name}_exit")
    if prio: a("s_setprio 0")
    V3 = Regs("v", 1, 255)
    u0, u1, u2, vl16, vO = [V3.alloc() for _ in range(5)]
    vW = [V3.alloc() for _ in range(2)]
    of = V3.alloc(128, 4)
    acc3 = [V3.alloc(16, 4) for _ in range(2)]
    fW = [[V3.alloc(4, 4) for _ in range(2)] for _ in range(2)]
    Pk = V3.alloc(8, 4)
    sOUT = S_A
    s_o, s_so = 62, 63
    srd(a, sOUT, P_OUT, P_OUT + 1, OUT_BYTES)
    a(f"""
    v_lshlrev_b32 v{vl16}, 4, v0
    s_lshl_b32 s{s_t}, s{s_rb}, 2
    s_add_u32 s{s_t}, s{s_t}, s{s_w}
    s_lshl_b32 s{s_o}, s{s_t}, 15
    s_mul_i32 s{s_t2}, s{s_br}, {2*MB}
    s_add_u32 s{s_o}, s{s_o}, s{s_t2}
    s_add_u32 s{s_o}, s{s_o}, {OFP}
    s_mul_i32 s{s_t}, s{s_t}, {32*1792}
    s_mul_i32 s{s_t2}, s{s_br}, 896
    s_add_u32 s{s_t}, s{s_t}, s{s_t2}
    s_lshl_b32 s{s_t2}, s{s_ct}, 7
    s_add_u32 s{s_so}, s{s_t}, s{s_t2}
    v_and_b32 v{u0}, 31, v0
    v_mul_u32_u24 v{u0}, 1792, v{u0}
    v_lshrrev_b32 v{u1}, 5, v0
    v_lshl_add_u32 v{vO}, v{u1}, 4, v{u0}
    v_lshrrev_b32 v{u0}, 5, v0
    v_lshlrev_b32 v{u0}, 2, v{u0}
    v_bfe_u32 v{u1}, v0, 2, 2
    v_add_u32 v{u0}, v{u0}, v{u1}
    v_lshlrev_b32 v{u0}, 7, v{u0}
    v_bfe_u32 v{u1}, v0, 4, 1
    v_lshl_add_u32 v{u0}, v{u1}, 5, v{u0}
    v_and_b32 v{u2}, 3, v0
    v_lshl_add_u32 v{u0}, v{u2}, 3, v{u0}
    v_add_u32 v{u0}, {WO}, v{u0}
    v_bfe_u32 v{u1}, v0, 3, 1
    v_lshl_add_u32 v{vW[0]}, v{u1}, 6, v{u0}
    v_xor_b32 v{u1}, 1, v{u1}
    v_lshl_add_u32 v{vW[1]}, v{u1}, 6, v{u0}
    s_cmp_eq_u32 s{s_w}, 0
    s_cbranch_scc0 {name}_s2_ok
    s_lshl_b32 s{s_t}, s{s_rb}, 7
    s_add_u32 s{s_t}, s{s_t}, {F_O}
    v_mov_b32 v{u0}, s{s_t}
    v_mov_b32 v{u1}, 16
    """)
    poll(a, f"{name}_s2p", WSR, u0, u2, u1, spin_max, sleep=1)
    a.label(f"{name}_s2_ok")
    a("s_barrier")
    a.stamp(12)
    marks = []
    for st in range(8):
        a(f"s_add_u32 s{s_t}, s{s_o}, {4096*st}")
        for k in range(4):
            t = 4 * st + k
            a(f"buffer_load_dwordx4 v[{of+4*t}:{of+4*t+3}], v{vl16}, {WSR}, s{s_t} offen offset:{1024*k}")
            marks.append(a.vm_mark())
    def reads(t, buf):
        return [f"ds_read_b64_tr_b16 v[{fW[buf][jj]+2*u}:{fW[buf][jj]+2*u+1}], v{vW[jj]} offset:{(28*(t>>1) + 16*(t&1) + 8*u)*128}" for jj in range(2) for u in range(2)]
    for r in reads(0, 0): a(r)
    buf = 0
    for t in range(32):
        a("s_waitcnt lgkmcnt(0)")
        nxt = reads(t + 1, buf ^ 1) if t < 31 else []
        for r in nxt: a(r)
        a.wait_vm(marks[t])
        for jj in range(2):
            C = "0" if t == 0 else f"v[{acc3[jj]}:{acc3[jj]+15}]"
            a(f"v_mfma_f32_32x32x16_bf16 v[{acc3[jj]}:{acc3[jj]+15}], v[{fW[buf][jj]}:{fW[buf][jj]+3}], v[{of+4*t}:{of+4*t+3}], {C}")
        buf ^= 1
    if not diag_s1: a.stamp(13)
    for jj in range(2):
        for gg in range(4):
            a(f"v_cvt_pk_bf16_f32 v{Pk+2*gg}, v{acc3[jj]+4*gg}, v{acc3[jj]+4*gg+1}")
            a(f"v_cvt_pk_bf16_f32 v{Pk+2*gg+1}, v{acc3[jj]+4*gg+2}, v{acc3[jj]+4*gg+3}")
        for k in (0, 2):
            a(f"v_permlane32_swap_b32 v{Pk+2*k}, v{Pk+2*k+2}")
            a(f"v_permlane32_swap_b32 v{Pk+2*k+1}, v{Pk+2*k+3}")
        for k in (0, 2):
            a(f"buffer_store_dwordx4 v[{Pk+2*k}:{Pk+2*k+3}], v{vO}, s[{sOUT}:{sOUT+3}], s{s_so} offen offset:{64*jj + 16*k}")
    if not diag_s1: a.stamp(14)
    return max(V.hi, V3.hi) + 1
```

```python
import sys
from fcommon import *
from p1b import phase1, phase1_end
from p2b import phase23, loader_jobs

NAME = "concat_heads__linear_kernel_hedgehog__mha_block__prompt_kernel"


def gen_fused(name=NAME, stamps=False, p1={}, p2={}):
    a = Asm(); a.stamps = stamps
    a(f"s_cmp_ge_u32 s2, {NWG}\ns_cbranch_scc1 {name}_end")
    a.stamp(0)
    a(f"""
    s_load_dwordx16 s[40:55], s[0:1], 0
    s_load_dwordx4 s[56:59], s[0:1], 64
    v_lshrrev_b32 v1, 6, v0
    s_and_b32 s{s_x}, s2, 7
    s_lshr_b32 s{s_i}, s2, 3
    v_readfirstlane_b32 s{s_w}, v1
    v_and_b32 v0, 63, v0
    s_lshr_b32 s{s_br}, s{s_x}, 2
    s_and_b32 s{s_t}, s{s_x}, 3
    s_lshl_b32 s{s_t}, s{s_t}, 2
    s_and_b32 s{s_rb}, s{s_i}, 3
    s_add_u32 s{s_rb}, s{s_rb}, s{s_t}
    s_lshr_b32 s{s_ct}, s{s_i}, 2
    s_mov_b32 s69, s2
    """)
    V1, regs = phase1(a, name, **p1)
    loader_jobs(a, name)
    phase1_end(a, name, regs)
    n1 = V1.hi + 1
    n2 = phase23(a, name, **p2)
    a.label(f"{name}_exit")
    if stamps:
        a("s_waitcnt vmcnt(0)")
        a.stamp(15)
        a("s_mov_b32 s2, s69")
        a.stamp_flush(16, S_WS, 0, s_w, 1, 2, 8)
    a.label(f"{name}_end")
    a("s_endpgm")
    nv = max(n1, n2)
    text = kernel_head(name) + a.render()
    return text, kernel_desc(name, nv), dict(grid=NWG, block=512, lds=LDS_BYTES, vgprs=nv, nops=a.nnop)


def build(**kw):
    t, d, info = gen_fused(**kw)
    head = f"""; concat_heads(linear_kernel_hedgehog, mha_block) for gfx950, produced by a hand-written generator
; @launch grid=({info['grid']},1,1) block=({info['block']},1,1) lds={info['lds']}
"""
    return head + '.amdgcn_target "amdgcn-amd-amdhsa--gfx950"\n.text\n' + t + '.section .rodata,"a"\n' + d, info


if __name__ == "__main__":
    out = sys.argv[1] if len(sys.argv) > 1 else "fused.s"
    kw = eval(sys.argv[2]) if len(sys.argv) > 2 else {}
    txt, info = build(**kw)
    open(out, "w").write(txt)
    print(info, len(txt.splitlines()), "lines")
```

```python
import sys
from fcommon import *
from p1b import phase1, phase1_end
from p2b import phase23, loader_jobs

NAME = "concat_heads__linear_kernel_hedgehog__mha_block__prompt_kernel"


def gen_fused(name=NAME, stamps=False, p1={}, p2={}, dbg_wg=None):
    a = Asm(); a.stamps = stamps
    a(f"s_cmp_ge_u32 s2, {NWG}\ns_cbranch_scc1 {name}_end")
    a.stamp(0)
    a(f"""
    s_load_dwordx16 s[40:55], s[0:1], 0
    s_load_dwordx4 s[56:59], s[0:1], 64
    v_lshrrev_b32 v1, 6, v0
    s_and_b32 s{s_x}, s2, 7
    s_lshr_b32 s{s_i}, s2, 3
    v_readfirstlane_b32 s{s_w}, v1
    v_and_b32 v0, 63, v0
    s_lshr_b32 s{s_br}, s{s_x}, 2
    s_and_b32 s{s_t}, s{s_x}, 3
    s_lshl_b32 s{s_t}, s{s_t}, 2
    s_and_b32 s{s_rb}, s{s_i}, 3
    s_add_u32 s{s_rb}, s{s_rb}, s{s_t}
    s_lshr_b32 s{s_ct}, s{s_i}, 2
    s_mov_b32 s69, s2
    """)
    V1, regs = phase1(a, name, **p1)
    loader_jobs(a, name)
    phase1_end(a, name, regs)
    n1 = V1.hi + 1
    n2 = phase23(a, name, **p2)
    a.label(f"{name}_exit")
    if stamps:
        a("s_waitcnt vmcnt(0)")
        a.stamp(15)
        a("s_mov_b32 s2, s69")
        if dbg_wg is None:
            a.stamp_flush(16, S_WS, 0, s_w, 1, 2, 8)
        else:
            a(f"s_lshl_b32 s68, s2, 3\ns_add_u32 s68, s68, s{s_w}\ns_cmp_eq_u32 s68, {dbg_wg*8}\ns_cbranch_scc0 {name}_end")
            a("s_mov_b64 exec, 1\nv_mov_b32 v1, 0")
            for i in range(1, 16):
                a(f"s_sub_u32 s68, s{70+2*i}, s70\nv_mov_b32 v2, s68\nbuffer_store_dword v2, v1, s[{S_DBG}:{S_DBG+3}], 0 offen offset:{4*i}")
    a.label(f"{name}_end")
    a("s_endpgm")
    nv = max(n1, n2)
    text = kernel_head(name) + a.render()
    return text, kernel_desc(name, nv), dict(grid=NWG, block=512, lds=LDS_BYTES, vgprs=nv, nops=a.nnop)


def build(**kw):
    t, d, info = gen_fused(**kw)
    head = f"""; concat_heads(linear_kernel_hedgehog, mha_block) for gfx950, produced by a hand-written generator
; @launch grid=({info['grid']},1,1) block=({info['block']},1,1) lds={info['lds']}
"""
    return head + '.amdgcn_target "amdgcn-amd-amdhsa--gfx950"\n.text\n' + t + '.section .rodata,"a"\n' + d, info


if __name__ == "__main__":
    out = sys.argv[1] if len(sys.argv) > 1 else "fused.s"
    kw = eval(sys.argv[2]) if len(sys.argv) > 2 else {}
    txt, info = build(**kw)
    open(out, "w").write(txt)
    print(info, len(txt.splitlines()), "lines")
```
